```python
import torch

def _softmax(x, axis=-1):
    return torch.softmax(x, dim=axis)

def _gelu(x):
    return torch.nn.functional.gelu(x, approximate='tanh')

def _silu(x):
    return torch.nn.functional.silu(x)

def _sigmoid(x):
    return torch.sigmoid(x)

def _layernorm(x, axis=-1, eps=1e-05):
    m = x.mean(dim=axis, keepdim=True)
    v = x.var(dim=axis, keepdim=True, unbiased=False)
    return (x - m) / torch.sqrt(v + eps)

def _scatter_add(tgt, idx, src, axis=0):
    return tgt.clone().index_add_(axis, idx, src)

def _segment_sum(src, seg, n):
    out = torch.zeros((n,) + src.shape[1:], dtype=src.dtype)
    return out.index_add_(0, seg, src)

def _pad(x, pw):
    flat = tuple((v for pair in reversed(pw) for v in pair))
    return torch.nn.functional.pad(x, flat)
kernel_name = 'adaLN_cond__sliding_block_cached__glu_gated_reglu__prompt'

def setup_inputs():

    _w = lambda a: (lambda t: t.to(torch.bfloat16) if t.is_floating_point() else t)(torch.as_tensor(a))

    def _A_setup():
        B, Sq, D = (1, 2048, 640)
        Hq, Hkv, Sk, Dh = (32, 32, 2048, 128)
        assert Hq % Hkv == 0, (Hq, Hkv)
        return {'x': _w((lambda *s: torch.randn(*s, dtype=torch.bfloat16) * 0.05)(B, Sq, D)), 'k_cache': _w((lambda *s: torch.randn(*s, dtype=torch.bfloat16) * 1.6)(B, Hkv, Sk, Dh)), 'v_cache': _w((lambda *s: torch.randn(*s, dtype=torch.bfloat16) * 0.8)(B, Hkv, Sk, Dh)), 'wq': _w((lambda *s: torch.randn(*s, dtype=torch.bfloat16) * 1.6)(D, Hq * Dh) * D ** (-0.5)), 'wo': _w((lambda *s: torch.randn(*s, dtype=torch.bfloat16) * 0.8)(Hq * Dh, D) * (Hq * Dh) ** (-0.5))}
    _A_in = _A_setup()

    def _B_setup():
        B, S, D, F = (1, 2048, 640, 1728)
        return {'x': _w((lambda *s: torch.randn(*s, dtype=torch.bfloat16) * 0.05)(B, S, D)), 'W_gate': _w((lambda *s: torch.randn(*s, dtype=torch.bfloat16) * 0.4)(D, F) * (2.0 / D) ** 0.5), 'W_up': _w((lambda *s: torch.randn(*s, dtype=torch.bfloat16) * 0.4)(D, F) * (2.0 / D) ** 0.5), 'W_down': _w((lambda *s: torch.randn(*s, dtype=torch.bfloat16) * 0.4)(F, D) * (1.0 / F) ** 0.5)}
    _B_in = _B_setup()
    return {'A_x': _A_in['x'], 'A_k_cache': _A_in['k_cache'], 'A_v_cache': _A_in['v_cache'], 'A_wq': _A_in['wq'], 'A_wo': _A_in['wo'], 'B_x': _B_in['x'], 'B_W_gate': _B_in['W_gate'], 'B_W_up': _B_in['W_up'], 'B_W_down': _B_in['W_down'], 'c': _w((lambda *s: torch.randn(*s, dtype=torch.bfloat16) * 0.2)(1, 640) * 8.0), 'w_mod': _w((lambda *s: torch.randn(*s, dtype=torch.bfloat16) * 0.2)(640, 6 * 640) * 640 ** (-0.5) * 8.0)}

def reference(A_x, A_k_cache, A_v_cache, A_wq, A_wo, B_x, B_W_gate, B_W_up, B_W_down, c, w_mod):

    def _A_ref(x, k_cache, v_cache, wq, wo):
        B, Sq, D = x.shape
        Hq, Dh = (32, 128)
        Hkv, Sk = (k_cache.shape[1], k_cache.shape[2])
        W = min(4096, max(256, Sk // 4))
        rep = Hq // Hkv
        q = (lambda x, *d: x.permute(*d))((x @ wq).reshape(B, Sq, Hq, Dh), 0, 2, 1, 3)
        k = (lambda x, n, axis: torch.repeat_interleave(x, n, dim=axis))(k_cache[:, :, Sk - W:, :], rep, axis=1)
        v = (lambda x, n, axis: torch.repeat_interleave(x, n, dim=axis))(v_cache[:, :, Sk - W:, :], rep, axis=1)
        scores = torch.einsum('bhqd,bhkd->bhqk', q, k) * Dh ** (-0.5)
        p = _softmax(scores, axis=-1)
        o = torch.einsum('bhqk,bhkd->bhqd', p, v)
        return (lambda x, *d: x.permute(*d))(o, 0, 2, 1, 3).reshape(B, Sq, Hq * Dh) @ wo

    def _B_ref(x, W_gate, W_up, W_down):
        gate = torch.einsum('bsd,df->bsf', x, W_gate)
        up = torch.einsum('bsd,df->bsf', x, W_up)
        gate = gate * (lambda x, dt: x.to(dt))(gate > 0, gate.dtype)
        h = gate * up
        return torch.einsum('bsf,fd->bsd', h, W_down)
    x = A_x
    mod = (_silu(c) @ w_mod).reshape(c.shape[0], 6, 1, -1)
    sa, ca, ga, sb, cb, gb = (mod[:, 0].clone(), mod[:, 1].clone(), mod[:, 2].clone(), mod[:, 3].clone(), mod[:, 4].clone(), mod[:, 5].clone())
    h = _layernorm(x, axis=-1) * (1 + ca) + sa
    x = x + ga * _A_ref(h, A_k_cache, A_v_cache, A_wq, A_wo)
    h = _layernorm(x, axis=-1) * (1 + cb) + sb
    x = x + gb * _B_ref(h, B_W_gate, B_W_up, B_W_down)
    return x
```

```python
import re
from functools import lru_cache

TRANS = ("v_exp_f32", "v_log_f32", "v_rcp_f32", "v_rsq_f32", "v_sqrt_f32", "v_sin_f32", "v_cos_f32")


class I:
    __slots__ = ("t", "prod", "need", "sid", "auto")

    def __init__(self, t, prod=None, need=()):
        self.t = t
        self.prod = prod
        self.need = tuple(need)
        self.sid = None
        self.auto = False

    def __repr__(self):
        return self.t


def op(t):
    return t.split()[0] if t.split() else ""


@lru_cache(maxsize=None)
def kind(t):
    o = op(t)
    if t.endswith(":"):
        return "label"
    if o.startswith("."):
        return "dir"
    if o.startswith("v_mfma"):
        return "mfma"
    if o.startswith("ds_"):
        return "ds"
    if o.startswith("buffer_") or o.startswith("global_"):
        return "vm"
    if o.startswith("s_load") or o.startswith("s_buffer_load") or o in ("s_memtime", "s_memrealtime"):
        return "smem"
    if o == "s_waitcnt":
        return "wait"
    if o.startswith("v_"):
        return "valu"
    if o.startswith("s_"):
        return "salu"
    raise ValueError("unknown instr " + t)


_REG = re.compile(r"^(-|abs\()?([vas])(\d+)\)?$")
_RNG = re.compile(r"^(-|abs\()?([vas])\[(\d+):(\d+)\]\)?$")


def regs(opnd):
    opnd = opnd.strip()
    if opnd in ("vcc", "vcc_lo", "vcc_hi"):
        return [("s", "vcc")]
    if opnd in ("exec", "exec_lo", "exec_hi"):
        return [("s", "exec")]
    if opnd == "m0":
        return [("s", "m0")]
    m = _REG.match(opnd)
    if m:
        return [(m.group(2), int(m.group(3)))]
    m = _RNG.match(opnd)
    if m:
        return [(m.group(2), r) for r in range(int(m.group(3)), int(m.group(4)) + 1)]
    return []


def operands(t):
    body = t.split(None, 1)
    if len(body) < 2:
        return []
    s = body[1].split(";")[0]
    out, depth, cur = [], 0, ""
    for ch in s:
        if ch in "[(":
            depth += 1
        if ch in "])":
            depth -= 1
        if ch == "," and depth == 0:
            out.append(cur.strip()); cur = ""
        else:
            cur += ch
    out.append(cur.strip())
    last = out[-1].split()
    if last:
        out[-1] = last[0]
    return out


@lru_cache(maxsize=None)
def rw(t):
    k = kind(t)
    o = op(t)
    ops = operands(t)
    R, W = set(), set()
    if k == "mfma":
        W.update(regs(ops[0]))
        for x in ops[1:4]:
            R.update(regs(x))
    elif k == "valu":
        if o.startswith("v_cmp"):
            W.update(regs(ops[0]))
            for x in ops[1:]:
                R.update(regs(x))
        elif o.startswith("v_permlane") and "swap" in o:
            for x in ops[:2]:
                R.update(regs(x)); W.update(regs(x))
        elif o.startswith(("v_add_co", "v_sub_co", "v_addc_co", "v_subb_co")):
            W.update(regs(ops[0])); W.update(regs(ops[1]))
            for x in ops[2:]:
                R.update(regs(x))
        else:
            W.update(regs(ops[0]))
            for x in ops[1:]:
                R.update(regs(x))
            if o.startswith(("v_fmac", "v_dot2c", "v_writelane")) or "_dpp" in o or " row_" in t or "quad_perm" in t:
                R.update(regs(ops[0]))
            if o.startswith("v_cndmask") and len(ops) == 3:
                R.add(("s", "vcc"))
    elif k == "ds":
        if o.startswith("ds_read") or o.startswith("ds_bpermute") or o.startswith("ds_swizzle"):
            W.update(regs(ops[0]))
            for x in ops[1:]:
                R.update(regs(x))
        else:
            for x in ops:
                R.update(regs(x))
    elif k == "vm":
        if o in ("buffer_wbl2", "buffer_inv"):
            pass
        elif " lds" in t or o.startswith("global_load_lds"):
            for x in ops:
                R.update(regs(x))
            R.add(("s", "m0"))
        elif "_load" in o:
            W.update(regs(ops[0]))
            for x in ops[1:]:
                R.update(regs(x))
        else:
            for x in ops:
                R.update(regs(x))
            if "atomic" in o and " sc0" in t:
                W.update(regs(ops[0]))
    elif k == "smem":
        W.update(regs(ops[0]))
        for x in ops[1:]:
            R.update(regs(x))
    elif k == "salu":
        if o.startswith(("s_cmp", "s_cbranch", "s_branch", "s_barrier", "s_nop", "s_setprio", "s_endpgm", "s_sleep")):
            for x in ops:
                R.update(regs(x))
        else:
            W.update(regs(ops[0]))
            for x in ops[1:]:
                R.update(regs(x))
            if "saveexec" in o:
                W.add(("s", "exec")); R.add(("s", "exec"))
    return R, W


@lru_cache(maxsize=None)
def states(t):
    if kind(t) in ("label", "dir") or "; opt" in t:
        return 0
    if op(t) == "s_nop":
        return int(t.split()[1], 0) + 1
    return 1


def passes(t):
    o = op(t)
    if "32x32x16" in o:
        return 8
    if "16x16x32" in o:
        return 4
    raise ValueError(o)


@lru_cache(maxsize=None)
def hazard_need(p, c):
    kp, kc = kind(p), kind(c)
    if kc in ("label", "dir", "wait") or kp in ("label", "dir", "wait"):
        return 0
    Rp, Wp = rw(p)
    Rc, Wc = rw(c)
    need = 0
    vecW = {r for r in Wp if r[0] in "va"}
    sW = {r for r in Wp if r[0] == "s"}
    oc, opn = op(c), op(p)
    if kp == "valu":
        if kc == "mfma" and vecW & Rc:
            need = max(need, 2)
        if kc == "valu" and vecW & Rc:
            if oc.startswith("v_permlane") or "_dpp" in oc or " row_" in c or "quad_perm" in c:
                need = max(need, 2)
            if oc.startswith(("v_readlane", "v_readfirstlane")):
                need = max(need, 1)
            if opn.startswith(TRANS) and not oc.startswith(TRANS):
                need = max(need, 1)
        if opn.startswith(TRANS) and kc in ("ds", "vm", "mfma") and vecW & Rc:
            need = max(need, 2)
        if sW:
            if kc == "valu" and sW & Rc:
                need = max(need, 4 if oc.startswith(("v_readlane", "v_writelane")) else 2)
            if kc == "vm" and sW & Rc:
                need = max(need, 5)
            if kc == "salu" and sW & Rc:
                need = max(need, 1)
            if ("s", "exec") in sW and kc == "mfma":
                need = max(need, 4)
    if kp == "salu":
        if ("s", "m0") in Wp and kc == "vm" and ("s", "m0") in Rc:
            need = max(need, 1)
    if kp == "mfma":
        ps = passes(p)
        D = set(regs(operands(p)[0]))
        C = set(regs(operands(p)[3]))
        if kc == "mfma":
            oc_ = operands(c)
            cC = set(regs(oc_[3])); cAB = set(regs(oc_[1])) | set(regs(oc_[2])); cD = set(regs(oc_[0]))
            if D & cAB:
                need = max(need, 8 if ps == 4 else 12)
            if D & cC and not (D == cC and passes(c) == ps):
                need = max(need, 6 if ps == 4 else 10)
            if D & cD and not (D == cC and passes(c) == ps):
                need = max(need, 6 if ps == 4 else 10)
        elif kc in ("valu", "ds", "vm"):
            if D & (Rc | Wc):
                need = max(need, 8 if ps == 4 else 12)
            if kc == "valu" and C & Wc:
                need = max(need, 3 if ps == 4 else 7)
            if kc in ("ds", "vm") and C & Wc:
                need = max(need, 3 if ps == 4 else 7)
    if kp == "vm" and ("store_dwordx4" in opn or "store_dwordx3" in opn):
        data = set(regs(operands(p)[1 if opn.startswith("global") else 0]))
        if data & Wc:
            need = max(need, 2)
    return need


class Stream:
    def __init__(self):
        self.segs = []

    def seg(self, sid, instrs):
        instrs = [x if isinstance(x, I) else I(x) for x in instrs]
        self.segs.append((sid, instrs))

    def _simulate(self, extra):
        q = {"vm": [], "lgkm": []}
        done = set()
        issued = set()
        needed = {}
        for sid, ins in self.segs:
            for pos, x in enumerate(ins):
                key = (sid, pos)
                if "; opt" in x.t:
                    continue
                w = dict(extra.get(key, {}))
                for tok in x.need:
                    if tok not in issued:
                        raise ValueError(f"token {tok} needed by '{x.t}' (seg {sid}) never produced before")
                    for c in ("vm", "lgkm"):
                        if tok in q[c]:
                            n = len(q[c]) - 1 - q[c].index(tok)
                            n = min(n, 63 if c == "vm" else 15)
                            if c == "lgkm" and any(isinstance(t, tuple) and t and t[0] == "SMEM" for t in q[c]):
                                n = 0
                            w[c] = min(w.get(c, 99), n)
                for c, n in w.items():
                    if len(q[c]) > n:
                        q[c] = q[c][len(q[c]) - n:] if n else []
                if w:
                    d = needed.setdefault(key, {})
                    for c, n in w.items():
                        d[c] = min(d.get(c, 99), n)
                k = kind(x.t)
                if k == "wait":
                    m = re.search(r"vmcnt\((\d+)\)", x.t)
                    if m:
                        n = int(m.group(1)); q["vm"] = q["vm"][max(0, len(q["vm"]) - n):] if n else []
                    m = re.search(r"lgkmcnt\((\d+)\)", x.t)
                    if m:
                        n = int(m.group(1)); q["lgkm"] = q["lgkm"][max(0, len(q["lgkm"]) - n):] if n else []
                elif k == "vm":
                    tok = x.prod if x.prod is not None else ("anon", id(x), len(issued))
                    q["vm"].append(tok); issued.add(tok)
                    if len(q["vm"]) > 63:
                        print(f"WARNING: >63 vm outstanding at '{x.t}' seg {sid}")
                elif k == "ds":
                    tok = x.prod if x.prod is not None else ("anon", id(x), len(issued))
                    q["lgkm"].append(tok); issued.add(tok)
                elif k == "smem":
                    tok = ("SMEM", id(x), len(issued))
                    q["lgkm"].append(tok); issued.add(tok)
                    if x.prod is not None:
                        raise ValueError("use explicit lgkmcnt(0) for smem")
        return needed

    def finalize(self, name="", autonop=True, verbose=False):
        need = self._simulate({})
        need2 = self._simulate(need)
        for k, d in need2.items():
            e = need.setdefault(k, {})
            for c, n in d.items():
                e[c] = min(e.get(c, 99), n)
        first = {}
        for sid, ins in self.segs:
            txt = [x.t for x in ins]
            if sid in first:
                if first[sid] != txt:
                    for a, b in zip(first[sid], txt):
                        if a != b:
                            raise ValueError(f"segment {sid} instances differ: '{a}' vs '{b}'")
                    raise ValueError(f"segment {sid} instances differ in length")
            else:
                first[sid] = txt
        static = {}
        for sid, txt in first.items():
            out = []
            for pos, t in enumerate(txt):
                w = need.get((sid, pos))
                if w:
                    s = "s_waitcnt"
                    if "vm" in w:
                        s += f" vmcnt({w['vm']})"
                    if "lgkm" in w:
                        s += f" lgkmcnt({w['lgkm']})"
                    out.append(s)
                out.append(t)
            static[sid] = out
        for _ in range(3000):
            dyn = []
            for sid, _ins in self.segs:
                for pos, t in enumerate(static[sid]):
                    dyn.append((sid, pos, t))
            fix = None
            for i, (sid, pos, t) in enumerate(dyn):
                if kind(t) in ("label", "dir", "wait"):
                    continue
                dist = 0
                j = i - 1
                while j >= 0 and dist < 12:
                    pt = dyn[j][2]
                    n = hazard_need(pt, t)
                    if n > dist:
                        fix = (sid, pos, n - dist, pt, t)
                        break
                    dist += states(pt)
                    j -= 1
                if fix:
                    break
            if not fix:
                break
            sid, pos, short, pt, t = fix
            if verbose or not autonop:
                print(f"[{name}] hazard in seg {sid}: '{pt}' -> '{t}' short {short}")
            if not autonop:
                raise ValueError("hazard")
            static[sid].insert(pos, f"s_nop {short - 1}")
        else:
            return self._finalize_slow(static, name)
        out = []
        seen = set()
        for sid, _ins in self.segs:
            if sid in seen:
                continue
            seen.add(sid)
            out.extend(static[sid])
        return out

    def _finalize_slow(self, static, name):
        for _ in range(5000):
            dyn = []
            for sid, _ins in self.segs:
                for pos, t in enumerate(static[sid]):
                    dyn.append((sid, pos, t))
            fix = None
            for i, (sid, pos, t) in enumerate(dyn):
                if kind(t) in ("label", "dir", "wait"):
                    continue
                dist = 0
                j = i - 1
                while j >= 0 and dist < 12:
                    pt = dyn[j][2]
                    n = hazard_need(pt, t)
                    if n > dist:
                        fix = (sid, pos, n - dist, pt, t)
                        break
                    dist += states(pt)
                    j -= 1
                if fix:
                    break
            if not fix:
                break
            sid, pos, short, pt, t = fix
            static[sid].insert(pos, f"s_nop {short - 1}")
        out = []
        seen = set()
        for sid, _ins in self.segs:
            if sid in seen:
                continue
            seen.add(sid)
            out.extend(static[sid])
        return out


def cost(t):
    k = kind(t)
    if k == "mfma":
        return 8
    if k == "vm":
        return 9
    if op(t).startswith(TRANS):
        return 8
    if k in ("label", "dir"):
        return 0
    return 4


def pack(mfmas, fixed, valu, budget=24):
    n = len(mfmas)
    fixed_cost = [sum(cost(x.t) for x in fixed.get(g, [])) for g in range(n)]
    out = []
    j = 0
    for g in range(n):
        out.append(mfmas[g])
        out.extend(fixed.get(g, []))
        used = fixed_cost[g]
        rem_cost = sum(cost(v[0].t) for v in valu[j:])
        rem_cap = sum(max(0, budget - fixed_cost[h]) for h in range(g, n))
        frac = min(1.0, rem_cost / rem_cap) if rem_cap > 0 else 1.0
        tgt = used + max(0, budget - used) * frac
        while j < len(valu):
            v, lo, hi = valu[j]
            if lo > g:
                break
            c = cost(v.t)
            must = any(h2 <= g for (_v, _l, h2) in valu[j:j + 40])
            if used + c <= budget and (used + c / 2 <= tgt or must) or must:
                out.append(v); used += c; j += 1
            else:
                break
    out.extend(v[0] for v in valu[j:])
    return out


def gapcosts(lines, per=32):
    tot = 0
    cur = None
    for t in lines:
        if kind(t) == "mfma":
            if cur is not None:
                tot += max(per, cur)
            cur = 8
        elif cur is not None:
            cur += cost(t) if op(t) != "s_nop" else 4 * states(t)
        else:
            tot += cost(t)
    if cur is not None:
        tot += max(per, cur)
    return tot
```

```python
from asmlib import *

NAME = "adaLN_cond__sliding_block_cached__glu_gated_reglu__prompt"
A_X, A_K, A_V, A_WQ, A_WO, A_BX, A_WG, A_WU, A_WD, A_C, A_WMOD, A_OUT, A_DBG, A_WS = [8 * i for i in range(14)]
MODP = 0x0
MODF = 0x10000
UBP = 0x14000
STATS = 0x30000
XN = 0x100000
Y = 0x400000
X1 = 0x700000
WOF = 0xA00000
WDF = 0xF00000
ACT = 0x1200000
OB = 0x2000000
WS_SIZE = 0x3000000
CSCALE = 0.08838834764831845 * 1.4426950408889634

import struct
def f32(x):
    return "0x%08x" % struct.unpack("<I", struct.pack("<f", x))[0]

def srd(d, lo, hi, size):
    return [f"s_mov_b32 s{d}, s{lo}", f"s_mov_b32 s{d+1}, s{hi}", f"s_mov_b32 s{d+2}, {size:#x}", f"s_mov_b32 s{d+3}, 0x20000"]

def srd_off(d, lo, hi, off, size):
    o = off if isinstance(off, str) else f"{off:#x}"
    sz = size if isinstance(size, str) else f"{size:#x}"
    return [f"s_add_u32 s{d}, s{lo}, {o}", f"s_addc_u32 s{d+1}, s{hi}, 0", f"s_mov_b32 s{d+2}, {sz}", f"s_mov_b32 s{d+3}, 0x20000"]

def kernel_text(label, lines):
    out = [".p2align 8", f".type {label},@function", f"{label}:"]
    for t in lines:
        out.append(t if t.endswith(":") or t.startswith(".") else "    " + t)
    return "\n".join(out) + "\n"

def descriptor(label, nfv, acc, nsgpr=102):
    return f""".p2align 6
.amdhsa_kernel {label}
  .amdhsa_next_free_vgpr {nfv}
  .amdhsa_next_free_sgpr {nsgpr}
  .amdhsa_accum_offset {acc}
  .amdhsa_group_segment_fixed_size 0
  .amdhsa_kernarg_size 112
  .amdhsa_user_sgpr_count 2
  .amdhsa_user_sgpr_kernarg_segment_ptr 1
  .amdhsa_system_sgpr_workgroup_id_x 1
.end_amdhsa_kernel
"""

def bf16_round(dst, src):
    return [f"v_cvt_pk_bf16_f32 v{dst}, v{src}, v{src}", f"v_lshlrev_b32 v{dst}, 16, v{dst}"]

def unpack(lo, hi, src):
    return [f"v_lshlrev_b32 v{lo}, 16, v{src}", f"v_and_b32 v{hi}, 0xffff0000, v{src}"]
```

```python
from common import *

N_MOD, N_LN, N_WO, N_WD = 240, 128, 128, 54
K0_GRID = N_MOD + N_LN + N_WO + N_WD
K0_LDS = 40960

def fin(lines, name):
    st = Stream(); st.seg("a", lines)
    return st.finalize(name)

def role_mod():
    L = []
    A = L.append
    L += srd(12, 4, 5, 1280) + srd(16, 6, 7, 640 * 7680)
    A("s_mul_i32 s24, s2, 1093"); A("s_lshr_b32 s24, s24, 16")
    A("s_mul_i32 s25, s24, 60"); A("s_sub_u32 s25, s2, s25")
    A("v_lshrrev_b32 v1, 3, v0")
    A("v_and_b32 v2, 7, v0")
    A("v_mul_u32_u24 v3, 7680, v1"); A("v_lshl_add_u32 v3, v2, 4, v3")
    A("v_lshlrev_b32 v4, 1, v1")
    A("s_mul_i32 s26, s24, 320")
    A(f"s_mul_i32 s27, s24, {160*7680}"); A("s_lshl_b32 s28, s25, 7"); A("s_add_u32 s27, s27, s28")
    for p in range(5):
        A(I(f"buffer_load_ushort v{8+p}, v4, s[12:15], s26 offen offset:{64*p}", prod=("c", p)))
    for p in range(5):
        A(I(f"buffer_load_dwordx4 v[{16+4*p}:{19+4*p}], v3, s[16:19], s27 offen", prod=("w", p)))
        if p < 4:
            A(f"s_add_u32 s27, s27, {32*7680}")
    for j in range(8):
        A(f"v_mov_b32 v{40+j}, 0")
    A(f"s_mov_b32 s29, {f32(-1.4426950408889634)}")
    for p in range(5):
        r = 8 + p
        A(I(f"v_lshlrev_b32 v{r}, 16, v{r}", need=[("c", p)]))
        A(f"v_mul_f32 v13, s29, v{r}")
        A("v_exp_f32 v13, v13")
        A("v_add_f32 v13, 1.0, v13")
        A("v_rcp_f32 v13, v13")
        A(f"v_mul_f32 v{r}, v{r}, v13")
        L += bf16_round(r, r)
    for p in range(5):
        for d in range(4):
            u = unpack(48, 49, 16 + 4 * p + d)
            A(I(u[0], need=[("w", p)])); A(u[1])
            A(f"v_fmac_f32 v{40+2*d}, v{8+p}, v48")
            A(f"v_fmac_f32 v{41+2*d}, v{8+p}, v49")
    A("v_lshlrev_b32 v5, 5, v0")
    A("ds_write_b128 v5, v[40:43]"); A("ds_write_b128 v5, v[44:47] offset:16")
    A("s_waitcnt lgkmcnt(0)"); A("s_barrier")
    A("v_cmp_gt_u32 vcc, 64, v0")
    A("s_and_saveexec_b64 s[30:31], vcc")
    A("s_cbranch_execz K0_END")
    A("v_lshlrev_b32 v5, 2, v0")
    for i in range(32):
        A(I(f"ds_read_b32 v{8+i}, v5 offset:{256*i}", prod=("r", i)))
    for i in range(16):
        A(I(f"v_add_f32 v{8+i}, v{8+i}, v{24+i}", need=[("r", 16 + i)]))
    for w in (8, 4, 2, 1):
        for i in range(w):
            A(f"v_add_f32 v{8+i}, v{8+i}, v{8+w+i}")
    A("s_mul_i32 s26, s24, 15360"); A("s_lshl_b32 s28, s25, 8"); A("s_add_u32 s26, s26, s28")
    if MODP:
        A(f"s_add_u32 s26, s26, {MODP}")
    A("buffer_store_dword v8, v5, s[20:23], s26 offen")
    A("s_endpgm")
    return fin(L, "k0mod")

def role_ln():
    L = []
    A = L.append
    L += srd(12, 8, 9, 2048 * 1280)
    A(f"s_sub_u32 s24, s2, {N_MOD}")
    A("v_and_b32 v1, 15, v0"); A("v_lshrrev_b32 v2, 4, v0")
    A("v_mul_u32_u24 v3, 1280, v2"); A("v_lshl_add_u32 v3, v1, 4, v3")
    A(f"s_mul_i32 s25, s24, {16*1280}")
    for p in range(5):
        A(I(f"buffer_load_dwordx4 v[{8+4*p}:{11+4*p}], v3, s[12:15], s25 offen offset:{256*p}", prod=("x", p)))
    A("v_lshrrev_b32 v4, 1, v1"); A("v_lshlrev_b32 v4, 10, v4")
    A("v_and_b32 v5, 1, v1"); A("v_lshl_add_u32 v4, v5, 9, v4")
    A("v_lshl_add_u32 v4, v2, 4, v4")
    A("s_and_b32 s26, s24, 1"); A("s_lshl_b32 s26, s26, 8")
    A("s_lshr_b32 s27, s24, 1"); A("s_mul_i32 s27, s27, 40960"); A("s_add_u32 s27, s27, s26")
    A(f"s_add_u32 s27, s27, {XN}")
    for p in range(5):
        for d in range(4):
            u = unpack(32 + 8 * p + 2 * d, 33 + 8 * p + 2 * d, 8 + 4 * p + d)
            A(I(u[0], need=[("x", p)])); A(u[1])
    def tree(src, n, tmp, sq):
        if sq:
            for i in range(4):
                A(f"v_mul_f32 v{tmp+i}, v{src+i}, v{src+i}")
            for i in range(4, n):
                A(f"v_fmac_f32 v{tmp+i%4}, v{src+i}, v{src+i}")
        else:
            for i in range(4):
                A(f"v_add_f32 v{tmp+i}, v{src+i}, v{src+4+i}")
            for i in range(8, n):
                A(f"v_add_f32 v{tmp+i%4}, v{tmp+i%4}, v{src+i}")
        A(f"v_add_f32 v{tmp}, v{tmp}, v{tmp+1}"); A(f"v_add_f32 v{tmp+2}, v{tmp+2}, v{tmp+3}")
        A(f"v_add_f32 v6, v{tmp}, v{tmp+2}")
        for r in (8, 4, 2, 1):
            A(f"v_add_f32_dpp v6, v6, v6 row_ror:{r} row_mask:0xf bank_mask:0xf")
    tree(32, 40, 8, False)
    A(f"v_mul_f32 v6, {f32(1/640)}, v6")
    for i in range(40):
        A(f"v_sub_f32 v{32+i}, v{32+i}, v6")
    tree(32, 40, 8, True)
    A(f"v_mul_f32 v6, {f32(1/640)}, v6")
    A(f"v_add_f32 v6, {f32(1e-5)}, v6")
    A("v_rsq_f32 v6, v6")
    for i in range(40):
        A(f"v_mul_f32 v{32+i}, v{32+i}, v6")
    for p in range(5):
        for d in range(4):
            A(f"v_cvt_pk_f16_f32 v{8+4*p+d}, v{32+8*p+2*d}, v{33+8*p+2*d}")
        A(f"buffer_store_dwordx4 v[{8+4*p}:{11+4*p}], v4, s[20:23], s27 offen")
        if p < 4:
            A("s_add_u32 s27, s27, 8192")
    A("s_endpgm")
    return fin(L, "k0ln")

def role_relayout():
    L = []
    A = L.append
    A("v_lshrrev_b32 v1, 6, v0"); A("v_and_b32 v2, 63, v0")
    A("v_readfirstlane_b32 s27, v1")
    A("s_mul_i32 s28, s24, 40960")
    A("s_lshl_b32 s29, s27, 10")
    for i in range(10):
        A(f"v_add_u32 v3, {256*i}, v0")
        A("v_mul_u32_u24 v4, 52429, v3"); A("v_lshrrev_b32 v4, 22, v4")
        A("v_and_b32 v5, 3, v4"); A("v_bfe_u32 v4, v4, 3, 1"); A("v_lshl_or_b32 v4, v4, 2, v5")
        A("v_lshlrev_b32 v4, 1, v4"); A("v_xor_b32 v3, v3, v4"); A(f"v_lshlrev_b32 v{8+i}, 4, v3")
        A("s_mov_b32 m0, s29")
        A("s_add_u32 s29, s29, 4096")
        A(f"buffer_load_dwordx4 v{8+i}, s[12:15], s28 offen lds")
    A("v_lshrrev_b32 v3, 4, v2"); A("v_bfe_u32 v4, v2, 2, 2"); A("v_and_b32 v5, 3, v2")
    A("v_lshl_add_u32 v6, v3, 3, v4"); A("v_mul_u32_u24 v6, 1280, v6")
    A("v_lshl_add_u32 v6, v5, 3, v6")
    A("v_and_b32 v3, 1, v3"); A("v_lshl_or_b32 v3, v3, 2, v4")
    A("s_lshl_b32 s30, s27, 1")
    A("v_xor_b32 v4, s30, v3"); A("v_lshl_add_u32 v20, v4, 5, v6")
    A("v_xor_b32 v4, 1, v4"); A("v_lshl_add_u32 v21, v4, 5, v6")
    A("v_lshlrev_b32 v22, 4, v2")
    A("s_mul_i32 s31, s24, 5120"); A("s_add_u32 s26, s26, s31")
    A("s_waitcnt vmcnt(0)"); A("s_barrier")
    for m in range(5):
        for ii in range(2):
            f = 2 * m + ii
            for e in range(2):
                A(I(f"ds_read_b64_tr_b16 v[{24+4*f+2*e}:{25+4*f+2*e}], v{20+ii} offset:{m*256+e*5120}", prod=("f", f, e)))
    for m in range(5):
        for ii in range(2):
            f = 2 * m + ii
            A(f"s_add_u32 s32, s30, {8*m+ii}")
            A("s_mul_i32 s33, s32, 205"); A("s_lshr_b32 s33, s33, 10")
            A("s_mul_i32 s34, s33, 5"); A("s_sub_u32 s34, s32, s34")
            A("s_mul_i32 s33, s33, s25"); A("s_lshl_b32 s34, s34, 10")
            A("s_add_u32 s33, s33, s34"); A("s_add_u32 s33, s33, s26")
            A(I(f"buffer_store_dwordx4 v[{24+4*f}:{27+4*f}], v22, s[20:23], s33 offen", need=[("f", f, 0), ("f", f, 1)]))
    A("s_endpgm")
    return fin(L, "k0rl")

def gen_k0():
    L = []
    A = L.append
    A(f"s_cmp_ge_u32 s2, {K0_GRID}"); A("s_cbranch_scc1 K0_END")
    A(f"s_load_dwordx4 s[4:7], s[0:1], {A_C}")
    A(f"s_load_dwordx2 s[8:9], s[0:1], {A_X}")
    A(f"s_load_dwordx2 s[10:11], s[0:1], {A_WS}")
    A(f"s_load_dwordx2 s[36:37], s[0:1], {A_WO}")
    A(f"s_load_dwordx2 s[38:39], s[0:1], {A_WD}")
    A("s_waitcnt lgkmcnt(0)")
    L += srd(20, 10, 11, WS_SIZE)
    A(f"s_cmp_ge_u32 s2, {N_MOD + N_LN + N_WO}"); A("s_cbranch_scc1 K0_WD")
    A(f"s_cmp_ge_u32 s2, {N_MOD + N_LN}"); A("s_cbranch_scc1 K0_WO")
    A(f"s_cmp_ge_u32 s2, {N_MOD}"); A("s_cbranch_scc1 K0_LN")
    L += role_mod()
    A("K0_LN:")
    L += role_ln()
    A("K0_WD:")
    L += srd(12, 38, 39, 1728 * 1280)
    A(f"s_sub_u32 s24, s2, {N_MOD + N_LN + N_WO}"); A(f"s_mov_b32 s25, {54*5120}"); A(f"s_mov_b32 s26, {WDF}")
    A("s_branch K0_RL")
    A("K0_WO:")
    L += srd(12, 36, 37, 4096 * 1280)
    A(f"s_sub_u32 s24, s2, {N_MOD + N_LN}"); A(f"s_mov_b32 s25, {128*5120}"); A(f"s_mov_b32 s26, {WOF}")
    A("K0_RL:")
    L += role_relayout()
    A("K0_END:")
    A("s_endpgm")
    return L

if __name__ == "__main__":
    assert all((i * 1093) >> 16 == i // 60 for i in range(240))
    assert all((i * 52429) >> 22 == i // 80 for i in range(2560))
    assert all((i * 205) >> 10 == i // 5 for i in range(40))
    print("\n".join(gen_k0()))
```

```python
from common import *

K1_LDS = 163840
GS_OFF = 131072
FLAG_OFF = GS_OFF + 8192
S_A, S_B, S_WS, S_X0, S_X1, S_K, S_V = 12, 16, 20, 24, 28, 32, 36
HEAD, RB, WV, DA, DB, STR, XO, PB, DEL, CNT = 40, 41, 42, 43, 44, 45, 46, 47, 48, 49
def ACC(a, qt): return (2 * a + qt) * 16
def XR(par, i, qt): return 128 + par * 32 + i * 8 + qt * 4
def HR(tp, qt): return 192 + tp * 8 + qt * 4
def GSR(tp): return 208 + tp * 16
AW, AGS, L16, VD, TMP, VKV = 240, 244, 245, 246, 250, 254
def WF(t, a): return 128 + 16 * (t % 4) + 4 * a
def SR(b, qt): return 32 * b + 16 * qt
def PR(b, qt, s): return 64 + 16 * b + 8 * qt + 4 * s
def NEG(qt): return 96 + 16 * qt
def QF(qt, t): return 128 + 32 * qt + 4 * t
AK, AV, LA, T2 = 208, 216, 220, 224
def KF(t): return 128 + 4 * t
def VF(j): return 160 + 4 * j
def OA(a, qt): return (2 * a + qt) * 16
PARK = 192

def mf(d, dt, a, at, b, bt, c=None):
    cc = f"{dt}[{d}:{d+15}]" if c is None else c
    return f"v_mfma_f32_32x32x16_bf16 {dt}[{d}:{d+15}], {at}[{a}:{a+3}], {bt}[{b}:{b+3}], {cc}"

def dma(n):
    r = []
    for p in range(4):
        s, so = (S_A, DA) if p < 2 else (S_B, DB)
        off = f" offset:{1024*p}" if p else ""
        r.append(I(f"buffer_load_dwordx4 v{VD+p}, s[{s}:{s+3}], s{so} offen{off} lds", prod=("dma", n, p)))
    return r

def dma_adv():
    return [I("s_add_u32 m0, m0, 0x4000"), I("s_and_b32 m0, m0, 0x1ffff"),
            I(f"s_add_u32 s{DA}, s{DA}, s{STR}"), I(f"s_add_u32 s{DB}, s{DB}, s{STR}")]

def bar(n):
    return I("s_barrier", need=[("dma", n, p) for p in range(4)])

def pair_adv():
    return [I(f"s_add_u32 s{DEL}, s{PB}, 0x8000"), I(f"s_and_b32 s{DEL}, s{DEL}, 0x1ffff"),
            I(f"s_sub_u32 s50, s{DEL}, s{PB}"), I(f"s_mov_b32 s{PB}, s{DEL}"), I(f"s_mov_b32 s{DEL}, s50")]

def wf_reads(t):
    r = []
    n, i = t // 4, t % 4
    for a in range(4):
        for e in range(2):
            d = WF(t, a) + 2 * e
            r.append(I(f"ds_read_b64_tr_b16 a[{d}:{d+1}], v{AW+a} offset:{(n%2)*16384+i*4096+e*1024}", prod=("wf", t, a, e)))
    return r

def gs_reads(t):
    g = GSR(t % 2)
    return [I(f"ds_read_b128 v[{g+4*j}:{g+4*j+3}], v{AGS} offset:{(t%8)*128+16*j}", prod=("gs", t, j)) for j in range(4)]

def xn_loads(t):
    n, i = t // 4, t % 4
    r = []
    for qt in range(2):
        d = XR(n % 2, i, qt)
        s = S_X0 if qt == 0 else S_X1
        off = f" offset:{1024*i}" if i else ""
        r.append(I(f"buffer_load_dwordx4 v[{d}:{d+3}], v{L16}, s[{s}:{s+3}], s{XO} offen{off}", prod=("xn", t, qt)))
    return r

def modulate(t):
    n, i = t // 4, t % 4
    g = GSR(t % 2)
    r = []
    k = 0
    pend = None
    for qt in range(2):
        for d in range(4):
            x = XR(n % 2, i, qt) + d
            t0 = TMP + 2 * (k % 2)
            need = [("xn", t, 0), ("xn", t, 1)] + [("gs", t, j) for j in range(4)] if (d, qt) == (0, 0) else []
            r.append(I(f"v_fma_mix_f32 v{t0}, v{x}, v{g+2*d}, v{g+8+2*d} op_sel_hi:[1,0,0]", need=need))
            r.append(I(f"v_fma_mix_f32 v{t0+1}, v{x}, v{g+2*d+1}, v{g+8+2*d+1} op_sel:[1,0,0] op_sel_hi:[1,0,0]"))
            r.append(I(f"v_cvt_pk_bf16_f32 v{HR(t%2, qt)+d}, v{t0}, v{t0+1}"))
            k += 1
    return r

def qproj_trip(j):
    mfs, fixed, valu = [], {}, []
    def fx(g, *items):
        fixed.setdefault(g, []).extend(items)
    for ks in range(8):
        t = 8 * j + ks
        n, i = t // 4, t % 4
        g0 = 8 * ks
        for a in range(4):
            for qt in range(2):
                need = [("wf", t, aa, e) for aa in range(4) for e in range(2)] if (a, qt) == (0, 0) else []
                mfs.append(I(mf(ACC(a, qt), "v", WF(t, a), "a", HR(t % 2, qt), "v"), need=need))
        wr = wf_reads(t + 2)
        gr = gs_reads(t + 2)
        xl = xn_loads(t + 8)
        if i == 0:
            fx(g0, bar(n + 1))
            self_d = dma(n + 7)
            if ks == 4:
                opt = [f"s_cmp_lg_u32 s{CNT}, 4", "s_cbranch_scc1 K1_NOSW"]
                opt += [f"s_mov_b32 s{S_A+q}, s{S_K+q} ; opt" for q in range(3)] + [f"s_mov_b32 s{S_B+q}, s{S_V+q} ; opt" for q in range(3)]
                opt += [f"s_mov_b32 s{DA}, 0 ; opt", f"s_mov_b32 s{DB}, 0xffffc000 ; opt", f"s_mov_b32 s{STR}, 0x2000 ; opt"]
                opt += [f"v_mov_b32 v{VD}, v{VKV} ; opt", f"v_mov_b32 v{VD+1}, v{VKV} ; opt", f"v_mov_b32 v{VD+2}, v{VKV+1} ; opt", f"v_mov_b32 v{VD+3}, v{VKV+1} ; opt"]
                opt += ["K1_NOSW:"]
                fx(g0, *[I(x) for x in opt])
        fx(g0 + 0, gr[0], gr[1]); fx(g0 + 1, gr[2], gr[3], self_d[i])
        fx(g0 + 2, wr[0], wr[1]); fx(g0 + 3, wr[2], wr[3]); fx(g0 + 4, wr[4], wr[5]); fx(g0 + 5, wr[6], wr[7])
        fx(g0 + 6, xl[0]); fx(g0 + 7, xl[1])
        if i == 3:
            adv = dma_adv()
            fx(g0 + 2, adv[0]); fx(g0 + 3, adv[1]); fx(g0 + 4, adv[2]); fx(g0 + 5, adv[3])
            fx(g0 + 7, I(f"s_add_u32 s{XO}, s{XO}, 0x1000"))
        if ks == 2:
            pa = pair_adv()
            for q, x in enumerate(pa):
                fx(g0 + 2 + q, x)
        valu += [(x, g0, g0 + 7) for x in modulate(t + 1)]
        if ks == 5:
            valu += [(I(f"v_add_u32 v{AW+a}, s{DEL}, v{AW+a}"), g0 + 6, g0 + 7) for a in range(4)]
            valu += [(I(f"v_add_u32 v{AGS}, 0x400, v{AGS}"), g0 + 6, g0 + 7)]
    body = [I("K1_QL:")] + pack(mfs, fixed, valu)
    body += [I(f"s_sub_u32 s{CNT}, s{CNT}, 1"), I(f"s_cmp_lg_u32 s{CNT}, 0"), I("s_cbranch_scc1 K1_QL")]
    return body

def kread(n, t):
    return I(f"ds_read_b128 a[{KF(t)}:{KF(t)+3}], v{AK+t} offset:{(n%2)*16384}", prod=("kf", n, t))

def vread(n, j, e, base=None):
    s, a = j // 4, j % 4
    d = (VF(j) if base is None else base + 4 * j) + 2 * e
    return I(f"ds_read_b64_tr_b16 a[{d}:{d+1}], v{AV+a} offset:{(n%2)*16384+(2*s+e)*4096}", prod=("vf", n, j, e))

def qk_mfmas(n, u1, c0=False):
    r = []
    for t in range(8):
        for qt in range(2):
            d = SR(u1 % 2, qt)
            c = None
            if t == 0:
                c = "0" if c0 else f"v[{NEG(qt)}:{NEG(qt)+15}]"
            need = [("kf", n, t), ("kf", n, t + 1)] if (t % 2 == 0 and qt == 0) else []
            r.append(I(mf(d, "v", KF(t), "a", QF(qt, t), "v", c), need=need))
    return r

def pv_mfmas(n, u0, base=None):
    r = []
    for j in range(8):
        s, a = j // 4, j % 4
        for qt in range(2):
            need = [("vf", n, jj, e) for jj in (j, j + 1) for e in range(2)] if (j % 2 == 0 and qt == 0) else []
            f = VF(j) if base is None else base + 4 * j
            r.append(I(mf(OA(a, qt), "a", f, "a", PR(u0 % 2, qt, s), "v"), need=need))
    return r

def softmax(u):
    b = u % 2
    pairs = [(qt, k) for s in range(2) for qt in range(2) for k in range(4 * s, 4 * s + 4)]
    r = []
    prev = None
    def tail(p):
        qt, k = p
        x = SR(b, qt) + 2 * k
        return [I(f"v_add_f32 v{LA+2*qt}, v{LA+2*qt}, v{x}"), I(f"v_add_f32 v{LA+2*qt+1}, v{LA+2*qt+1}, v{x+1}"),
                I(f"v_cvt_pk_bf16_f32 v{PR(b, qt, k//4)+k%4}, v{x}, v{x+1}")]
    for p in pairs:
        qt, k = p
        x = SR(b, qt) + 2 * k
        r += [I(f"v_exp_f32 v{x}, v{x}"), I(f"v_exp_f32 v{x+1}, v{x+1}")]
        if prev:
            r += tail(prev)
        prev = p
    r += tail(prev)
    return r

def att_full(u, upd):
    n = 11 + u
    mfs = qk_mfmas(n, u + 1) + pv_mfmas(n, u - 1)
    fixed = {}
    def fx(g, *items):
        fixed.setdefault(g, []).extend(items)
    for q in range(4):
        fx(2 * q, kread(n, 4 + q))
    for j in range(8):
        fx(8 + 2 * j, vread(n, j, 0), vread(n, j, 1))
    fx(23, bar(n + 1))
    d = dma(n + 7)
    for q in range(4):
        fx(24 + 2 * q, kread(n + 1, q))
        fx(25 + 2 * q, d[q])
    adv = dma_adv()
    valu = [(x, 0, 31) for x in softmax(u)]
    for q in range(4):
        fx(1 + 2 * q, adv[q])
    if upd:
        pa = pair_adv()
        for q, x in enumerate(pa):
            fx(9 + 2 * q, x)
        ups = [(I(f"v_add_u32 v{AK+t}, s{DEL}, v{AK+t}"), 19, 22) for t in range(8)]
        ups2 = [(I(f"v_add_u32 v{AV+a}, s{DEL}, v{AV+a}"), 23, 31) for a in range(4)]
        nv = len(valu)
        i1 = nv * 19 // 32
        i2 = nv * 26 // 32
        valu = valu[:i1] + ups + valu[i1:i2] + ups2 + valu[i2:]
    return pack(mfs, fixed, valu)

def gen_k1():
    st = Stream()
    L = []
    A = L.append
    A("s_cmp_ge_u32 s2, 256"); A("s_cbranch_scc1 K1_END")
    A(f"s_load_dwordx4 s[4:7], s[0:1], {A_K}")
    A(f"s_load_dwordx2 s[8:9], s[0:1], {A_WQ}")
    A(f"s_load_dwordx2 s[10:11], s[0:1], {A_WS}")
    A("s_and_b32 s50, s2, 7"); A("s_lshr_b32 s51, s2, 3")
    A("s_and_b32 s52, s50, 3"); A("s_lshl_b32 s52, s52, 3"); A("s_and_b32 s53, s51, 7"); A(f"s_add_u32 s{HEAD}, s52, s53")
    A("s_lshr_b32 s52, s50, 2"); A("s_lshl_b32 s52, s52, 2"); A("s_lshr_b32 s53, s51, 3"); A(f"s_add_u32 s{RB}, s52, s53")
    A("v_lshrrev_b32 v1, 6, v0"); A("v_and_b32 v2, 63, v0")
    A(f"v_readfirstlane_b32 s{WV}, v1")
    A(f"v_lshlrev_b32 v{L16}, 4, v2")
    A("v_lshrrev_b32 v3, 4, v2")
    A("v_and_b32 v4, 15, v2")
    A("v_lshlrev_b32 v5, 2, v3"); A("v_xor_b32 v5, v4, v5"); A("v_lshlrev_b32 v5, 4, v5")
    A("v_lshl_add_u32 v6, v1, 4, v3"); A(f"v_lshl_add_u32 v{VD}, v6, 13, v5")
    for p in range(1, 4):
        A(f"v_add_u32 v{VD+p}, {31744*p}, v{VD}")
    A("s_waitcnt lgkmcnt(0)")
    L += srd(S_WS, 10, 11, WS_SIZE)
    A(f"s_lshl_b32 s50, s{HEAD}, 8"); A(f"s_sub_u32 s51, {640*8192}, s50")
    L += srd_off(S_A, 8, 9, "s50", "s51")
    for q in range(4):
        A(f"s_mov_b32 s{S_B+q}, s{S_A+q}")
    A("v_lshlrev_b32 v7, 4, v0")
    for q in range(4):
        A(f"s_mov_b32 s52, {MODP + q*15360}")
        A(I(f"buffer_load_dwordx4 v[{8+4*q}:{11+4*q}], v7, s[{S_WS}:{S_WS+3}], s52 offen", prod=("mp", 0, q)))
    for q in range(4):
        A(f"s_mov_b32 s52, {MODP + q*15360 + 4096}")
        A(I(f"buffer_load_dwordx4 v[{24+4*q}:{27+4*q}], v7, s[{S_WS}:{S_WS+3}], s52 offen", prod=("mp", 1, q)))
    A("v_lshlrev_b32 v52, 2, v0"); A("s_lshl_b32 s53, s2, 10"); A("s_add_u32 s53, s53, 5120")
    A("s_cmp_lt_u32 s2, 10"); A("s_cselect_b32 s53, s53, 0x7fff0000")
    for q in range(4):
        A(f"s_add_u32 s52, s53, {MODP + q*15360}")
        A(I(f"buffer_load_dword v{48+q}, v52, s[{S_WS}:{S_WS+3}], s52 offen", prod=("mf", q)))
    A(f"s_lshl_b32 s50, s{RB}, 3"); A(f"s_lshl_b32 s51, s{WV}, 1"); A("s_add_u32 s50, s50, s51")
    A("s_mul_i32 s50, s50, 40960"); A(f"s_add_u32 s50, s50, {XN}")
    L += srd_off(S_X0, 10, 11, "s50", 40960)
    A("s_add_u32 s50, s50, 40960")
    L += srd_off(S_X1, 10, 11, "s50", 40960)
    A(f"s_lshl_b32 m0, s{WV}, 12")
    A(f"s_mov_b32 s{DA}, 0"); A(f"s_mov_b32 s{DB}, 0"); A(f"s_mov_b32 s{STR}, 0x80000"); A(f"s_mov_b32 s{XO}, 0")
    for n in range(7):
        L += dma(n) + dma_adv()
        if n < 2:
            for i in range(4):
                L += xn_loads(4 * n + i)
            A(f"s_add_u32 s{XO}, s{XO}, 0x1000")
    A(f"s_lshl_b32 s50, s{HEAD}, 19"); A("s_add_u32 s50, s50, 393216")
    L += srd_off(S_K, 4, 5, "s50", 131072)
    A("s_sub_u32 s50, s50, 2048")
    L += srd_off(S_V, 6, 7, "s50", 133120)
    A("v_lshl_add_u32 v6, v1, 3, v3"); A("v_lshlrev_b32 v6, 8, v6")
    A(f"v_add_u32 v{VKV+1}, v6, v5")
    A("v_lshl_add_u32 v40, v1, 2, v3"); A("v_xor_b32 v40, v4, v40"); A(f"v_lshl_add_u32 v{VKV}, v40, 4, v6")
    A("v_lshrrev_b32 v41, 5, v2"); A("v_bfe_u32 v42, v2, 2, 2"); A("v_and_b32 v43, 3, v2")
    A("v_and_b32 v44, 1, v43"); A("v_lshrrev_b32 v45, 1, v43"); A("v_lshl_or_b32 v44, v44, 1, v45")
    A("v_lshlrev_b32 v44, 3, v44"); A("v_and_b32 v45, 1, v3"); A("v_lshl_add_u32 v44, v45, 5, v44")
    A("v_lshl_add_u32 v45, v41, 3, v42"); A("v_lshl_add_u32 v45, v45, 8, v44")
    A("v_lshl_add_u32 v46, v41, 2, v42"); A("v_lshl_add_u32 v46, v46, 8, v44")
    A(f"v_add_u32 v46, {2048 + 32768}, v46")
    for a in range(4):
        A(f"v_xor_b32 v47, {a}, v42"); A(f"v_lshl_add_u32 v{AW+a}, v47, 6, v45")
        A("v_lshl_add_u32 v47, v47, 6, v46"); A(f"v_accvgpr_write_b32 a{PARK+8+a}, v47")
    A("v_bfe_u32 v44, v2, 3, 2"); A("v_and_b32 v45, 7, v2")
    A("v_lshlrev_b32 v46, 12, v44"); A("v_lshl_add_u32 v46, v45, 8, v46"); A("v_add_u32 v46, 0x8000, v46")
    A("v_lshl_add_u32 v44, v44, 2, v43"); A("v_xor_b32 v44, v44, v41")
    for t in range(8):
        A(f"v_xor_b32 v47, {2*t}, v44"); A("v_lshl_add_u32 v47, v47, 4, v46"); A(f"v_accvgpr_write_b32 a{PARK+t}, v47")
    A("v_bfe_u32 v44, v2, 4, 1"); A("v_lshlrev_b32 v44, 17, v44"); A("v_lshl_add_u32 v44, v41, 8, v44")
    A("v_lshl_add_u32 v44, v4, 4, v44"); A(f"v_accvgpr_write_b32 a{PARK+12}, v44")
    A(f"v_lshlrev_b32 v{AGS}, 6, v41"); A(f"v_add_u32 v{AGS}, {GS_OFF}, v{AGS}")
    A(f"s_mov_b32 s{PB}, 0"); A(f"s_mov_b32 s{CNT}, 5")
    for r in range(128):
        A(f"v_accvgpr_write_b32 a{r}, 0")
    A(f"s_mov_b32 s52, {f32(CSCALE)}")
    for st_, base in ((0, 8), (1, 24)):
        for d in range(4):
            A(I(f"v_add_f32 v{base+d}, v{base+d}, v{base+4+d}", need=[("mp", st_, q) for q in range(4)]))
            A(f"v_add_f32 v{base+8+d}, v{base+8+d}, v{base+12+d}")
            A(f"v_add_f32 v{base+d}, v{base+d}, v{base+8+d}")
            L += bf16_round(base + d, base + d)
            A(f"v_add_f32 v{base+4+d}, 1.0, v{base+d}")
            L += bf16_round(base + 4 + d, base + 4 + d)
    A("v_cmp_gt_u32 vcc, 160, v0")
    for d in range(4):
        A(f"v_cndmask_b32 v{8+d}, v{12+d}, v{8+d}, vcc")
        A(f"v_mul_f32 v{8+d}, s52, v{8+d}")
        A(f"v_mul_f32 v{24+d}, s52, v{28+d}")
    A("v_subrev_u32 v44, 160, v0"); A("v_cndmask_b32 v44, v44, v0, vcc")
    A("v_lshrrev_b32 v45, 1, v44"); A("v_lshlrev_b32 v45, 6, v45"); A("v_and_b32 v44, 1, v44"); A("v_lshl_add_u32 v45, v44, 4, v45")
    A("v_cndmask_b32 v44, 0, 32, vcc".replace("v_cndmask_b32 v44, 0, 32, vcc", "v_cndmask_b32_e64 v44, 0, 32, vcc"))
    A("v_add_u32 v45, v45, v44")
    A(f"v_add_u32 v45, {GS_OFF}, v45")
    A("ds_write_b128 v45, v[8:11]")
    A("v_add_u32 v44, 96, v0"); A("v_lshrrev_b32 v45, 1, v44"); A("v_lshlrev_b32 v45, 6, v45"); A("v_and_b32 v44, 1, v44")
    A("v_lshl_add_u32 v45, v44, 4, v45"); A(f"v_add_u32 v45, {GS_OFF}, v45")
    A("v_cmp_gt_u32 vcc, 64, v0")
    A("s_and_saveexec_b64 s[54:55], vcc")
    A("ds_write_b128 v45, v[24:27]")
    A("s_mov_b64 exec, s[54:55]")
    A(I("v_add_f32 v48, v48, v49", need=[("mf", q) for q in range(4)])); A("v_add_f32 v50, v50, v51"); A("v_add_f32 v48, v48, v50")
    L += bf16_round(48, 48)
    A("v_add_f32 v49, 1.0, v48")
    L += bf16_round(49, 49)
    A("v_add_u32 v45, s53, v52"); A("v_subrev_u32 v45, 10240, v45")
    A("v_cmp_gt_u32 vcc, 2560, v45")
    A("v_cndmask_b32 v48, v48, v49, vcc")
    A(f"s_add_u32 s51, s53, {MODF}")
    A(f"buffer_store_dword v48, v52, s[{S_WS}:{S_WS+3}], s51 offen")
    for r in range(128):
        A(f"v_mov_b32 v{r}, 0")
    A("s_waitcnt lgkmcnt(0)")
    A(bar(0))
    L += gs_reads(0) + wf_reads(0) + gs_reads(1) + wf_reads(1)
    L += modulate(0)
    A(".p2align 3")
    st.seg("pro", L)
    for j in range(5):
        st.seg("q", qproj_trip(j))
    L = []
    A = L.append
    for t in range(8):
        A(f"v_accvgpr_read_b32 v{AK+t}, a{PARK+t}")
    for a in range(4):
        A(f"v_accvgpr_read_b32 v{AV+a}, a{PARK+8+a}")
    for t in range(8):
        A(kread(10, t))
    first = True
    for a in range(4):
        for qt in range(2):
            for tp in range(2):
                for d in range(4):
                    x = ACC(a, qt) + 8 * tp + 2 * d
                    need = [("xn", 47, 1)] if first else []
                    first = False
                    A(I(f"v_cvt_pk_bf16_f32 v{QF(qt, 2*a+tp)+d}, v{x}, v{x+1}", need=need))
    for q in range(4):
        A(f"v_mov_b32 v{LA+q}, 0")
    mfs = qk_mfmas(10, 0, c0=True)
    fixed = {7: [bar(11)]}
    d = dma(17)
    for q in range(4):
        fixed.setdefault(8 + 2 * q, []).append(kread(11, q))
        fixed.setdefault(9 + 2 * q, []).append(d[q])
    L += pack(mfs, fixed, [])
    for qt in range(2):
        s = SR(0, qt); m = T2 + 2 * qt
        A(f"v_max3_f32 v{m}, v{s}, v{s+1}, v{s+2}")
        for k in range(3, 15, 2):
            A(f"v_max3_f32 v{m}, v{m}, v{s+k}, v{s+k+1}")
        A(f"v_max_f32 v{m}, v{m}, v{s+15}")
        A(f"v_mov_b32 v{m+1}, v{m}")
    for qt in range(2):
        m = T2 + 2 * qt
        A(f"v_permlane32_swap_b32 v{m}, v{m+1}")
    for qt in range(2):
        m = T2 + 2 * qt
        A(f"v_max_f32 v{m}, v{m}, v{m+1}")
        for k in range(16):
            A(f"v_sub_f32 v{NEG(qt)+k}, 0, v{m}")
    for qt in range(2):
        m = T2 + 2 * qt
        for k in range(16):
            A(f"v_sub_f32 v{SR(0, qt)+k}, v{SR(0, qt)+k}, v{m}")
    mfs = qk_mfmas(11, 1)
    fixed = {}
    adv = dma_adv(); pa = pair_adv(); d = dma(18)
    for q in range(4):
        fixed.setdefault(q, []).append(kread(11, 4 + q))
        fixed.setdefault(q, []).append(adv[q])
    fixed.setdefault(4, []).extend(pa[:3]); fixed.setdefault(5, []).extend(pa[3:])
    fixed.setdefault(7, []).append(bar(12))
    for q in range(4):
        fixed.setdefault(8 + 2 * q, []).append(kread(12, q))
        fixed.setdefault(9 + 2 * q, []).append(d[q])
    ups = [(I(f"v_add_u32 v{AK+t}, s{DEL}, v{AK+t}"), 6, 7) for t in range(8)] + [(I(f"v_add_u32 v{AV+a}, s{DEL}, v{AV+a}"), 6, 15) for a in range(4)]
    sm = [(x, 0, 15) for x in softmax(0)]
    L += pack(mfs, fixed, sm[:24] + ups + sm[24:])
    A(f"s_mov_b32 s{CNT}, 7")
    A(".p2align 3")
    st.seg("mid", L)
    for j in range(7):
        body = [I("K1_AL:")] + att_full(1 + 2 * j, False) + att_full(2 + 2 * j, True)
        body += [I(f"s_sub_u32 s{CNT}, s{CNT}, 1"), I(f"s_cmp_lg_u32 s{CNT}, 0"), I("s_cbranch_scc1 K1_AL")]
        st.seg("att", body)
    L = []
    A = L.append
    for j in range(8):
        A(vread(26, j, 0)); A(vread(26, j, 1))
    sm = softmax(15)
    L += sm[:20]
    mfs = pv_mfmas(26, 14)
    fixed = {0: [bar(27)]}
    for j in range(8):
        fixed.setdefault(1 + j, []).extend([vread(27, j, 0, base=128), vread(27, j, 1, base=128)])
    L += pack(mfs, fixed, [(x, 0, 15) for x in sm[20:]])
    mfs = pv_mfmas(27, 15, base=128)
    fin = []
    for qt in range(2):
        l = LA + 2 * qt
        fin += [f"v_add_f32 v{l}, v{l}, v{l+1}", f"v_mov_b32 v{l+1}, v{l}"]
    fin += [f"v_accvgpr_read_b32 v{T2}, a{PARK+12}", "s_nop 0"]
    for qt in range(2):
        l = LA + 2 * qt
        fin += [f"v_permlane32_swap_b32 v{l}, v{l+1}"]
    for qt in range(2):
        l = LA + 2 * qt
        fin += [f"v_add_f32 v{l}, v{l}, v{l+1}", f"v_rcp_f32 v{l+1}, v{l}"]
    so = [f"s_lshl_b32 s50, s{RB}, 4", f"s_lshl_b32 s51, s{WV}, 2", "s_add_u32 s50, s50, s51", "s_lshl_b32 s50, s50, 17",
          f"s_lshl_b32 s51, s{HEAD}, 12", "s_add_u32 s50, s50, s51", f"s_add_u32 s50, s50, {OB}", "s_add_u32 s51, s50, 0x40000"]
    L += pack(mfs, {g: [I(so[g])] for g in range(8)}, [(I(x), 2, 15) for x in fin])
    k = 0
    for a in range(4):
        for qt in range(2):
            for tp in range(2):
                b = 8 * (k % 8)
                pk = 64 + 4 * (k % 8)
                for e in range(8):
                    A(f"v_accvgpr_read_b32 v{b+e}, a{OA(a, qt)+8*tp+e}")
                for e in range(8):
                    A(f"v_mul_f32 v{b+e}, v{b+e}, v{LA+2*qt+1}")
                for e in range(4):
                    A(f"v_cvt_pk_bf16_f32 v{pk+e}, v{b+2*e}, v{b+2*e+1}")
                A(f"buffer_store_dwordx4 v[{pk}:{pk+3}], v{T2}, s[{S_WS}:{S_WS+3}], s{50+qt} offen offset:{a*1024+tp*512}")
                k += 1
    A("K1_END:")
    A("s_endpgm")
    st.seg("tail", L)
    out = st.finalize("k1", verbose=True)
    return out

if __name__ == "__main__":
    o = gen_k1()
    i0 = o.index("K1_QL:"); i1 = o.index("s_cbranch_scc1 K1_QL")
    print("qproj trip est cycles", gapcosts(o[i0:i1]), "instrs", i1 - i0)
    i0 = o.index("K1_AL:"); i1 = o.index("s_cbranch_scc1 K1_AL")
    print("att trip est cycles", gapcosts(o[i0:i1]), "instrs", i1 - i0)
    open("k1.txt", "w").write("\n".join(o))
```

```python
from common import *

U = 4
PITCH = 336
WSTR = 64 * PITCH
SIDE_OFF = 4 * WSTR
K2_LDS = SIDE_OFF + 16384
K4_LDS = SIDE_OFF
S_WS, S_R, S_O, S_W = 20, 24, 28, 32
CT, RB, WV, SB, SA, SB2, SA2, CNT = 40, 41, 42, 43, 44, 45, 46, 47
VB, VA = 2, 6
VX, VG1, VG2 = 12, 22, 42
VROW, VY = 62, 63
STG = 72
def BF(s, qt): return STG + 36 * (s % U) + 4 * qt
def AF(s, ns): return STG + 36 * (s % U) + 16 + 4 * ns
def ACC(ns, qt): return (ns * 4 + qt) * 4
TMP = STG + 36 * U

def loads(s, rel, alt):
    sb, sa = (SB2, SA2) if alt else (SB, SA)
    r = []
    for qt in range(4):
        d = BF(s, qt)
        off = f" offset:{1024*rel}" if rel else ""
        r.append(I(f"buffer_load_dwordx4 v[{d}:{d+3}], v{VB+qt}, s[{S_WS}:{S_WS+3}], s{sb} offen{off}", prod=("b", s, qt)))
    for ns in range(5):
        d = AF(s, ns)
        f = 5 * rel + ns
        off = f" offset:{1024*(f%4)}" if f % 4 else ""
        r.append(I(f"buffer_load_dwordx4 v[{d}:{d+3}], v{VA+f//4}, s[{S_WS}:{S_WS+3}], s{sa} offen{off}", prod=("a", s, ns)))
    return [r[0], r[4], r[1], r[2], r[3], r[5], r[6], r[7], r[8]]

def step(s, ld, extra=()):
    mfs = []
    for ns in range(5):
        for qt in range(4):
            need = []
            if ns == 0 and qt == 0:
                need = [("b", s, q) for q in range(4)] + [("a", s, 0)]
            elif qt == 0:
                need = [("a", s, ns)] if ns in (1, 4) else []
                if ns == 1:
                    need = [("a", s, 1), ("a", s, 2), ("a", s, 3)]
            d = ACC(ns, qt)
            mfs.append(I(f"v_mfma_f32_16x16x32_bf16 a[{d}:{d+3}], v[{AF(s,ns)}:{AF(s,ns)+3}], v[{BF(s,qt)}:{BF(s,qt)+3}], a[{d}:{d+3}]", need=need))
    fixed = {}
    for i, x in enumerate(ld):
        fixed.setdefault(1 + 2 * i, []).append(x)
    for i, x in enumerate(extra):
        fixed.setdefault(2 * i, []).append(I(x))
    return pack(mfs, fixed, [], budget=8)

def gen(kid):
    k2 = kid == 2
    KS = 128 if k2 else 54
    NST = 32 if k2 else 14
    BB, AB = (OB, WOF) if k2 else (ACT, WDF)
    P = f"K{kid}"
    st = Stream()
    L = []
    A = L.append
    A("s_cmp_ge_u32 s2, 256"); A(f"s_cbranch_scc1 {P}_END")
    A(f"s_load_dwordx2 s[10:11], s[0:1], {A_WS}")
    if k2:
        A(f"s_load_dwordx2 s[4:5], s[0:1], {A_X}")
        A(f"s_load_dwordx4 s[12:15], s[0:1], {A_WG}")
    else:
        A(f"s_load_dwordx2 s[4:5], s[0:1], {A_OUT}")
    A("s_and_b32 s50, s2, 7"); A("s_lshr_b32 s51, s2, 3")
    A("s_lshr_b32 s52, s50, 1"); A("s_lshl_b32 s52, s52, 3"); A("s_and_b32 s53, s51, 7"); A(f"s_add_u32 s{RB}, s52, s53")
    A("s_and_b32 s52, s50, 1"); A("s_lshl_b32 s52, s52, 2"); A("s_lshr_b32 s53, s51, 3"); A(f"s_add_u32 s{CT}, s52, s53")
    A("v_lshrrev_b32 v1, 6, v0")
    A(f"v_and_b32 v{VB}, 63, v0")
    A(f"v_readfirstlane_b32 s{WV}, v1")
    A(f"v_lshlrev_b32 v{VB}, 4, v{VB}")
    for qt in range(1, 4):
        A(f"v_add_u32 v{VB+qt}, {qt*KS*1024}, v{VB}")
    A(f"v_mov_b32 v{VA}, v{VB}")
    for i in range(1, 5):
        A(f"v_add_u32 v{VA+i}, {4096*i}, v{VB}")
    A(f"s_mul_i32 s50, s{WV}, {NST}")
    A(f"s_mul_i32 s{SB}, s{RB}, {4*KS}"); A(f"s_add_u32 s{SB}, s{SB}, s50"); A(f"s_lshl_b32 s{SB}, s{SB}, 10"); A(f"s_add_u32 s{SB}, s{SB}, {BB}")
    A(f"s_mul_i32 s{SA}, s{CT}, {KS}"); A(f"s_add_u32 s{SA}, s{SA}, s50"); A(f"s_mul_i32 s{SA}, s{SA}, 5120"); A(f"s_add_u32 s{SA}, s{SA}, {AB}")
    A("v_lshrrev_b32 v68, 2, v0"); A("v_and_b32 v69, 3, v0")
    A(f"v_mul_u32_u24 v{VROW}, 1280, v68"); A("v_mul_u32_u24 v70, 40, v69"); A(f"v_add_u32 v{VROW}, v{VROW}, v70")
    A("v_lshlrev_b32 v70, 1, v70")
    A(f"s_mul_i32 s54, s{RB}, {64*1280}"); A(f"s_mul_i32 s55, s{CT}, 160"); A("s_add_u32 s54, s54, s55")
    A("s_lshl_b32 s55, s55, 1")
    A("s_waitcnt lgkmcnt(0)")
    L += srd(S_WS, 10, 11, WS_SIZE)
    if k2:
        L += srd(S_R, 4, 5, 2048 * 1280)
        A("s_mul_i32 s56, s2, 1214"); A("s_lshr_b32 s56, s56, 16")
        A("s_mul_i32 s57, s56, 54"); A("s_sub_u32 s57, s2, s57")
        A("s_cmp_lt_u32 s57, 27")
        A(f"s_cselect_b32 s{S_W}, s12, s14"); A(f"s_cselect_b32 s{S_W+1}, s13, s15")
        A("s_cselect_b32 s58, 0, 27"); A("s_sub_u32 s58, s57, s58")
        A(f"s_mov_b32 s{S_W+2}, {640*3456}"); A(f"s_mov_b32 s{S_W+3}, 0x20000")
        A(f"s_mul_i32 s59, s56, {160*3456}"); A("s_lshl_b32 s58, s58, 7"); A("s_add_u32 s59, s59, s58")
        A("s_mul_i32 s60, s56, 640"); A(f"s_add_u32 s60, s60, {MODF + 1920*4}")
        A(f"s_mul_i32 s61, s56, {2*3456*4}"); A("s_lshl_b32 s58, s57, 8"); A("s_add_u32 s61, s61, s58"); A(f"s_add_u32 s61, s61, {UBP}")
        A("s_cmp_lt_u32 s2, 216")
        for r in (59, 60, 61):
            A(f"s_cselect_b32 s{r}, s{r}, 0x7fff0000")
        T = TMP
        A(f"v_lshrrev_b32 v{T}, 3, v0"); A(f"v_and_b32 v{T+1}, 7, v0")
        A(f"v_mul_u32_u24 v{T+2}, 3456, v{T}"); A(f"v_lshl_add_u32 v{T+2}, v{T+1}, 4, v{T+2}")
        A(f"v_lshlrev_b32 v{T}, 2, v{T}")
        SW = STG + 36 * (U - 1)
        for p in range(5):
            A(I(f"buffer_load_dword v{SW+20+p}, v{T}, s[{S_WS}:{S_WS+3}], s60 offen offset:{128*p}", prod=("ss", p)))
            A(I(f"buffer_load_dword v{SW+25+p}, v{T}, s[{S_WS}:{S_WS+3}], s60 offen offset:{2560+128*p}", prod=("sg", p)))
        for p in range(5):
            A(I(f"buffer_load_dwordx4 v[{SW+4*p}:{SW+4*p+3}], v{T+2}, s[{S_W}:{S_W+3}], s59 offen", prod=("sw", p)))
            if p < 4:
                A(f"s_add_u32 s59, s59, {32*3456}")
    else:
        L += srd(S_O, 4, 5, 2048 * 1280)
        L += srd_off(S_R, 10, 11, X1, 2048 * 1280)
    for s in range(U - 1):
        L += loads(s, s, False)
    A(f"s_add_u32 s{SB}, s{SB}, {1024*(U-1)}"); A(f"s_add_u32 s{SA}, s{SA}, {5120*(U-1)}")
    for j in range(5):
        A(I(f"buffer_load_dwordx2 v[{VX+2*j}:{VX+2*j+1}], v{VROW}, s[{S_R}:{S_R+3}], s54 offen offset:{8*j}", prod=("x", j)))
    A(f"s_add_u32 s62, s55, {MODF + (1280 if k2 else 3200)*4}")
    for j in range(5):
        A(I(f"buffer_load_dwordx4 v[{VG1+4*j}:{VG1+4*j+3}], v70, s[{S_WS}:{S_WS+3}], s62 offen offset:{16*j}", prod=("g1", j)))
    if k2:
        A(f"s_add_u32 s62, s55, {MODF + 2560*4}")
        for j in range(5):
            A(I(f"buffer_load_dwordx4 v[{VG2+4*j}:{VG2+4*j+3}], v70, s[{S_WS}:{S_WS+3}], s62 offen offset:{16*j}", prod=("g2", j)))
        A("v_and_b32 v71, 31, v68"); A("v_lshlrev_b32 v71, 4, v71"); A("v_lshrrev_b32 v1, 5, v68"); A("v_mul_u32_u24 v1, 40960, v1")
        A("v_add_u32 v71, v71, v1")
        A(f"s_mul_i32 s63, s{CT}, 20"); A("v_mul_u32_u24 v1, 5, v69"); A("v_add_u32 v1, s63, v1")
        for j in range(5):
            A(f"v_add_u32 v11, {j}, v1"); A(f"v_lshrrev_b32 v{VY+j}, 1, v11"); A(f"v_lshl_add_u32 v{VY+j}, v{VY+j}, 9, v71")
            A("v_and_b32 v11, 1, v11"); A(f"v_lshl_add_u32 v{VY+j}, v11, 3, v{VY+j}")
    for r in range(80):
        A(f"v_accvgpr_write_b32 a{r}, 0")
    if k2:
        T = TMP
        for j in range(16):
            A(f"v_mov_b32 v{T+4+j}, 0")
        for p in range(5):
            for d in range(4):
                u = unpack(T + 1, T + 2, SW + 4 * p + d)
                A(I(u[0], need=[("sw", p), ("sg", p), ("ss", p)])); A(u[1])
                A(f"v_fmac_f32 v{T+4+2*d}, v{SW+25+p}, v{T+1}"); A(f"v_fmac_f32 v{T+5+2*d}, v{SW+25+p}, v{T+2}")
                A(f"v_fmac_f32 v{T+12+2*d}, v{SW+20+p}, v{T+1}"); A(f"v_fmac_f32 v{T+13+2*d}, v{SW+20+p}, v{T+2}")
        A(f"v_lshlrev_b32 v{T}, 6, v0"); A(f"v_add_u32 v{T}, {SIDE_OFF}, v{T}")
        for q in range(4):
            A(f"ds_write_b128 v{T}, v[{T+4+4*q}:{T+7+4*q}] offset:{16*q}")
        A(f"v_bfe_u32 v{T}, v0, 3, 3"); A(f"v_lshlrev_b32 v{T}, 6, v{T}"); A(f"v_and_b32 v{T+1}, 7, v0"); A(f"v_lshl_add_u32 v{T}, v{T+1}, 2, v{T}")
        A(f"v_bfe_u32 v{T+1}, v0, 6, 1"); A(f"v_lshl_add_u32 v{T}, v{T+1}, 5, v{T}"); A(f"v_add_u32 v{T}, {SIDE_OFF}, v{T}")
        A(f"v_mul_u32_u24 v{T+1}, {3456*4}, v{T+1}"); A(f"v_and_b32 v{T+2}, 63, v0"); A(f"v_lshl_add_u32 v{T+1}, v{T+2}, 2, v{T+1}")
        A("s_waitcnt lgkmcnt(0)"); A("s_barrier")
        for i in range(32):
            A(I(f"ds_read_b32 v{SW+i}, v{T} offset:{512*i}", prod=("r", i)))
        for i in range(16):
            A(I(f"v_add_f32 v{SW+i}, v{SW+i}, v{SW+16+i}", need=[("r", 16 + i)]))
        for w in (8, 4, 2, 1):
            for i in range(w):
                A(f"v_add_f32 v{SW+i}, v{SW+i}, v{SW+w+i}")
        A(f"v_mov_b32 v{T+3}, v{SW}")
        A(f"buffer_store_dword v{T+3}, v{T+1}, s[{S_WS}:{S_WS+3}], s61 offen")
    if k2:
        A(f"s_mov_b32 s{CNT}, {NST // U}")
        A(".p2align 3")
        st.seg("pro", L)
        for j in range(NST // U):
            body = [I(f"{P}_L:")]
            for i in range(U):
                s = U * j + i
                ex = []
                if i == 0:
                    ex = [f"s_cmp_eq_u32 s{CNT}, 1", f"s_cselect_b32 s{SB2}, 0x7fff0000, s{SB}", f"s_cselect_b32 s{SA2}, 0x7fff0000, s{SA}"]
                body += step(s, loads(s + U - 1, i, i > 0), ex)
            body += [I(f"s_add_u32 s{SB}, s{SB}, {1024*U}"), I(f"s_add_u32 s{SA}, s{SA}, {5120*U}"),
                     I(f"s_sub_u32 s{CNT}, s{CNT}, 1"), I(f"s_cmp_lg_u32 s{CNT}, 0"), I(f"s_cbranch_scc1 {P}_L")]
            st.seg("loop", body)
        L = []
        A = L.append
    else:
        for s in range(NST):
            t = s + U - 1
            ld, ex = [], []
            if t < NST:
                rel = s % U
                if t == 11:
                    ex = [f"s_cmp_eq_u32 s{WV}, 3", f"s_cselect_b32 s{SB2}, 0x7fff0000, s{SB}", f"s_cselect_b32 s{SA2}, 0x7fff0000, s{SA}"]
                ld = loads(t, rel, t >= 12)
            L += step(s, ld, ex)
            if s % U == U - 1:
                A(f"s_add_u32 s{SB}, s{SB}, {1024*U}"); A(f"s_add_u32 s{SA}, s{SA}, {5120*U}")
    A("v_and_b32 v1, 15, v0"); A(f"v_mul_u32_u24 v1, {PITCH}, v1"); A("v_bfe_u32 v11, v0, 4, 2"); A("v_lshl_add_u32 v1, v11, 4, v1")
    A(f"s_mul_i32 s50, s{WV}, {WSTR}"); A("v_add_u32 v1, s50, v1")
    A(f"v_mul_u32_u24 v11, {PITCH}, v68"); A("v_add_u32 v11, v11, v70")
    for ns in range(5):
        for qt in range(4):
            d = ACC(ns, qt)
            A(f"ds_write_b128 v1, a[{d}:{d+3}] offset:{qt*16*PITCH + ns*64}")
    A("s_waitcnt vmcnt(0) lgkmcnt(0)"); A("s_barrier")
    R = STG
    for w in range(4):
        for j in range(5):
            d = R + 20 * w + 4 * j
            A(I(f"ds_read_b128 v[{d}:{d+3}], v11 offset:{w*WSTR+16*j}", prod=("e", w, j)))
    X = R + 80
    for j in range(10):
        L += unpack(X + 2 * j, X + 2 * j + 1, VX + j)
    for i in range(20):
        A(I(f"v_add_f32 v{R+i}, v{R+i}, v{R+20+i}", need=[("e", 1, i // 4)]))
    for i in range(20):
        A(I(f"v_add_f32 v{R+40+i}, v{R+40+i}, v{R+60+i}", need=[("e", 3, i // 4)]))
    for i in range(20):
        A(f"v_add_f32 v{R+i}, v{R+i}, v{R+40+i}")
    for i in range(20):
        A(f"v_fmac_f32 v{X+i}, v{R+i}, v{VG1+i}")
    for j in range(10):
        A(f"v_cvt_pk_bf16_f32 v{VX+j}, v{X+2*j}, v{X+2*j+1}")
    if k2:
        A(f"s_add_u32 s54, s54, {X1}")
        for j in range(5):
            A(f"buffer_store_dwordx2 v[{VX+2*j}:{VX+2*j+1}], v{VROW}, s[{S_WS}:{S_WS+3}], s54 offen offset:{8*j}")
        for j in range(10):
            L += unpack(X + 2 * j, X + 2 * j + 1, VX + j)
        for i in range(20):
            A(f"v_mul_f32 v{R+i}, v{X+i}, v{VG2+i}")
        for j in range(10):
            A(f"v_cvt_pk_bf16_f32 v{R+20+j}, v{R+2*j}, v{R+2*j+1}")
        A(f"s_mul_i32 s50, s{RB}, {2*40960}"); A(f"s_add_u32 s50, s50, {Y}")
        for j in range(5):
            A(f"buffer_store_dwordx2 v[{R+20+2*j}:{R+21+2*j}], v{VY+j}, s[{S_WS}:{S_WS+3}], s50 offen")
        def red(acc):
            A(f"v_add_f32 v{acc}, v{acc}, v{acc+1}"); A(f"v_add_f32 v{acc+2}, v{acc+2}, v{acc+3}"); A(f"v_add_f32 v{acc}, v{acc}, v{acc+2}")
            A(f"v_add_f32_dpp v{acc}, v{acc}, v{acc} quad_perm:[1,0,3,2] row_mask:0xf bank_mask:0xf")
            A(f"v_add_f32_dpp v{acc}, v{acc}, v{acc} quad_perm:[2,3,0,1] row_mask:0xf bank_mask:0xf")
        a0 = R + 40
        for i in range(4):
            A(f"v_add_f32 v{a0+i}, v{X+i}, v{X+4+i}")
        for i in range(8, 20):
            A(f"v_add_f32 v{a0+i%4}, v{a0+i%4}, v{X+i}")
        red(a0)
        A(f"v_mul_f32 v{a0+4}, {f32(1/80)}, v{a0}")
        for i in range(20):
            A(f"v_sub_f32 v{X+i}, v{X+i}, v{a0+4}")
        for i in range(4):
            A(f"v_mul_f32 v{a0+i}, v{X+i}, v{X+i}")
        for i in range(4, 20):
            A(f"v_fmac_f32 v{a0+i%4}, v{X+i}, v{X+i}")
        red(a0)
        A(f"v_mov_b32 v{a0+5}, v{a0}")
        A("v_lshlrev_b32 v1, 6, v68")
        A(f"s_lshl_b32 s50, s{RB}, 12"); A(f"s_lshl_b32 s51, s{CT}, 3"); A("s_add_u32 s50, s50, s51"); A(f"s_add_u32 s50, s50, {STATS}")
        A(f"buffer_store_dwordx2 v[{a0+4}:{a0+5}], v1, s[{S_WS}:{S_WS+3}], s50 offen")
    else:
        for j in range(5):
            A(f"buffer_store_dwordx2 v[{VX+2*j}:{VX+2*j+1}], v{VROW}, s[{S_O}:{S_O+3}], s54 offen offset:{8*j}")
    A(f"{P}_END:")
    A("s_endpgm")
    st.seg("epi", L)
    return st.finalize(P, verbose=False)

if __name__ == "__main__":
    assert all((i * 1214) >> 16 == i // 54 for i in range(256))
    for k in (2, 4):
        o = gen(k)
        open(f"k{k}.txt", "w").write("\n".join(o))
        print(k, len(o))
```

```python
from common import *

K3_GRID = 224
K3_LDS = 131072 + 1024
UB_OFF = 131072
S_A, S_B, S_WS, S_Y0, S_Y1 = 12, 16, 20, 24, 28
CS, RB, WV, DA, XO, PB, DEL, CNT = 40, 41, 42, 43, 46, 47, 48, 49
def ACC(a, qt): return (2 * a + qt) * 16
def YR(par, i, qt): return 128 + par * 32 + i * 8 + qt * 4
AW, L16, VD, RS, VST, T = 192, 194, 195, 197, 201, 204
def WF(t, a): return 16 * (t % 4) + 4 * a

def dma(n):
    r = []
    for p in range(4):
        s = S_A if p < 2 else S_B
        off = f" offset:{1024*p}" if p else ""
        r.append(I(f"buffer_load_dwordx4 v{VD+p%2}, s[{s}:{s+3}], s{DA} offen{off} lds", prod=("dma", n, p)))
    return r

def dma_adv():
    return [I("s_add_u32 m0, m0, 0x4000"), I("s_and_b32 m0, m0, 0x1ffff"), I(f"s_add_u32 s{DA}, s{DA}, {64*3456}")]

def bar(n):
    return I("s_barrier", need=[("dma", n, p) for p in range(4)])

def pair_adv():
    return [I(f"s_add_u32 s{DEL}, s{PB}, 0x8000"), I(f"s_and_b32 s{DEL}, s{DEL}, 0x1ffff"),
            I(f"s_sub_u32 s50, s{DEL}, s{PB}"), I(f"s_mov_b32 s{PB}, s{DEL}"), I(f"s_mov_b32 s{DEL}, s50")]

def wf_reads(t):
    r = []
    n, i = t // 4, t % 4
    for a in range(4):
        for e in range(2):
            d = WF(t, a) + 2 * e
            r.append(I(f"ds_read_b64_tr_b16 a[{d}:{d+1}], v{AW+a%2} offset:{(n%2)*16384+i*4096+(a//2)*2048+e*512}", prod=("wf", t, a, e)))
    return r

def y_loads(t):
    n, i = t // 4, t % 4
    r = []
    for qt in range(2):
        d = YR(n % 2, i, qt)
        s = S_Y0 if qt == 0 else S_Y1
        off = f" offset:{1024*i}" if i else ""
        r.append(I(f"buffer_load_dwordx4 v[{d}:{d+3}], v{L16}, s[{s}:{s+3}], s{XO} offen{off}", prod=("y", t, qt)))
    return r

def trip(j):
    mfs, fixed, valu = [], {}, []
    def fx(g, *items):
        fixed.setdefault(g, []).extend(items)
    for ks in range(8):
        t = 8 * j + ks
        n, i = t // 4, t % 4
        g0 = 8 * ks
        for a in range(4):
            for qt in range(2):
                need = [("wf", t, aa, e) for aa in range(4) for e in range(2)] + [("y", t, 0), ("y", t, 1)] if (a, qt) == (0, 0) else []
                d = ACC(a, qt); w = WF(t, a); y = YR(n % 2, i, qt)
                mfs.append(I(f"v_mfma_f32_32x32x16_bf16 v[{d}:{d+15}], a[{w}:{w+3}], v[{y}:{y+3}], v[{d}:{d+15}]", need=need))
        wr = wf_reads(t + 2)
        if i == 0:
            fx(g0, bar(n + 1))
            dd = dma(n + 7)
        yl = y_loads(t + 7)
        if i == 1:
            fx(g0, I(f"s_add_u32 s{XO}, s{XO}, 0x1000"))
        fx(g0 + 0, yl[0]); fx(g0 + 1, yl[1])
        fx(g0 + 2, wr[0], wr[1]); fx(g0 + 3, wr[2], wr[3]); fx(g0 + 4, wr[4], wr[5]); fx(g0 + 5, wr[6], wr[7])
        fx(g0 + 6, dd[i])
        if i == 3:
            fx(g0 + 7, *dma_adv())
        if ks == 2:
            fx(g0 + 7, *pair_adv())
        if ks == 5:
            valu += [(I(f"v_add_u32 v{AW+a}, s{DEL}, v{AW+a}"), g0 + 6, g0 + 7) for a in range(2)]
    body = [I("K3_L:")] + pack(mfs, fixed, valu)
    body += [I(f"s_sub_u32 s{CNT}, s{CNT}, 1"), I(f"s_cmp_lg_u32 s{CNT}, 0"), I("s_cbranch_scc1 K3_L")]
    return body

def gen_k3():
    st = Stream()
    L = []
    A = L.append
    A(f"s_cmp_ge_u32 s2, {K3_GRID}"); A("s_cbranch_scc1 K3_END")
    A(f"s_load_dwordx4 s[4:7], s[0:1], {A_WG}")
    A(f"s_load_dwordx2 s[10:11], s[0:1], {A_WS}")
    A("s_and_b32 s50, s2, 7"); A("s_lshr_b32 s51, s2, 3")
    A("s_and_b32 s52, s50, 1"); A("s_lshl_b32 s52, s52, 2"); A("s_and_b32 s53, s51, 3"); A(f"s_add_u32 s{RB}, s52, s53")
    A("s_lshr_b32 s52, s50, 1"); A("s_mul_i32 s52, s52, 7"); A("s_lshr_b32 s53, s51, 2"); A(f"s_add_u32 s{CS}, s52, s53")
    A(f"s_cmp_ge_u32 s{CS}, 27"); A("s_cbranch_scc1 K3_END")
    A("v_lshrrev_b32 v1, 6, v0"); A("v_and_b32 v2, 63, v0")
    A(f"v_readfirstlane_b32 s{WV}, v1")
    A(f"v_lshlrev_b32 v{L16}, 4, v2")
    A("v_lshrrev_b32 v3, 3, v2"); A("v_lshl_add_u32 v3, v1, 4, v3"); A("v_mul_u32_u24 v3, 3456, v3")
    A("v_bfe_u32 v4, v2, 4, 1"); A("v_lshlrev_b32 v4, 2, v4"); A("v_and_b32 v5, 7, v2"); A("v_xor_b32 v4, v4, v5")
    A(f"v_lshl_add_u32 v{VD}, v4, 4, v3"); A(f"v_add_u32 v{VD+1}, {8*3456-1024}, v{VD}")
    A("s_waitcnt lgkmcnt(0)")
    L += srd(S_WS, 10, 11, WS_SIZE)
    A(f"s_lshl_b32 s50, s{CS}, 7"); A(f"s_sub_u32 s51, {640*3456}, s50")
    L += srd_off(S_A, 4, 5, "s50", "s51")
    A("s_add_u32 s51, s51, 2048")
    L += srd_off(S_B, 6, 7, "s50", "s51")
    A(f"s_sub_u32 s{S_B}, s{S_B}, 2048"); A(f"s_subb_u32 s{S_B+1}, s{S_B+1}, 0")
    A(f"s_lshl_b32 s50, s{RB}, 3"); A(f"s_lshl_b32 s51, s{WV}, 1"); A("s_add_u32 s54, s50, s51")
    A("s_mul_i32 s50, s54, 40960"); A(f"s_add_u32 s50, s50, {Y}")
    L += srd_off(S_Y0, 10, 11, "s50", 40960)
    A("s_add_u32 s50, s50, 40960")
    L += srd_off(S_Y1, 10, 11, "s50", 40960)
    A(f"s_lshl_b32 m0, s{WV}, 12")
    A(f"s_mov_b32 s{DA}, 0"); A(f"s_mov_b32 s{XO}, 0")
    A(f"s_and_b32 s50, s{WV}, 1"); A(f"s_mul_i32 s50, s50, {3456*4}"); A(f"s_lshr_b32 s51, s{WV}, 1"); A(f"s_mul_i32 s51, s51, {1728*4}")
    A("s_add_u32 s50, s50, s51"); A(f"s_lshl_b32 s51, s{CS}, 8"); A("s_add_u32 s50, s50, s51"); A(f"s_add_u32 s50, s50, {UBP}")
    A("v_lshlrev_b32 v6, 2, v2")
    for q in range(4):
        A(I(f"buffer_load_dword v{8+q}, v6, s[{S_WS}:{S_WS+3}], s50 offen", prod=("ub", q)))
        A(f"s_add_u32 s50, s50, {2*3456*4}")
    for n in range(7):
        L += dma(n) + dma_adv()
        if n < 2:
            for i in range(4):
                if 4 * n + i < 7:
                    L += y_loads(4 * n + i)
            if n == 0:
                A(f"s_add_u32 s{XO}, s{XO}, 0x1000")
        if n == 1:
            A("v_and_b32 v7, 31, v2"); A("v_lshlrev_b32 v7, 6, v7")
            A("s_lshl_b32 s50, s54, 11"); A(f"s_add_u32 s50, s50, {STATS}")
            for qt in range(2):
                for q in range(4):
                    d = 16 + 16 * qt + 4 * q
                    A(I(f"buffer_load_dwordx4 v[{d}:{d+3}], v7, s[{S_WS}:{S_WS+3}], s50 offen offset:{2048*qt+16*q}", prod=("st", qt, q)))
    A("v_lshrrev_b32 v50, 5, v2"); A("v_bfe_u32 v51, v2, 2, 2"); A("v_and_b32 v52, 3, v2")
    A("v_and_b32 v53, 1, v52"); A("v_lshrrev_b32 v54, 1, v52"); A("v_lshl_or_b32 v53, v53, 1, v54"); A("v_lshlrev_b32 v53, 3, v53")
    A("v_bfe_u32 v54, v2, 4, 1"); A("v_lshl_add_u32 v53, v54, 5, v53")
    A("v_lshl_add_u32 v55, v50, 3, v51"); A("v_lshl_add_u32 v53, v55, 7, v53")
    A("v_lshrrev_b32 v55, 1, v51"); A(f"v_lshl_add_u32 v{AW}, v55, 6, v53")
    A("v_xor_b32 v55, 1, v55"); A(f"v_lshl_add_u32 v{AW+1}, v55, 6, v53")
    A(f"v_mul_u32_u24 v{VST}, {54*1024}, v54"); A(f"v_lshl_add_u32 v{VST}, v50, 8, v{VST}")
    A("v_and_b32 v55, 15, v2"); A(f"v_lshl_add_u32 v{VST}, v55, 4, v{VST}")
    A(f"v_lshlrev_b32 v{VST+1}, 5, v50"); A(f"v_add_u32 v{VST+1}, {UB_OFF}, v{VST+1}")
    A(f"s_mov_b32 s{PB}, 0"); A(f"s_mov_b32 s{CNT}, 5")
    A(I("v_add_f32 v8, v8, v9", need=[("ub", q) for q in range(4)])); A("v_add_f32 v10, v10, v11"); A("v_add_f32 v8, v8, v10")
    A("v_lshlrev_b32 v6, 2, v0"); A(f"v_add_u32 v6, {UB_OFF}, v6")
    A("ds_write_b32 v6, v8")
    for qt in range(2):
        b = 16 + 16 * qt
        A(I(f"v_add_f32 v56, v{b}, v{b+2}", need=[("st", qt, q) for q in range(4)]))
        A(f"v_add_f32 v57, v{b+1}, v{b+3}")
        for q in range(2, 8):
            A(f"v_add_f32 v56, v56, v{b+2*q}"); A(f"v_add_f32 v57, v57, v{b+2*q+1}")
        A("v_mul_f32 v56, 0x3e000000, v56")
        A("v_mov_b32 v58, 0")
        for q in range(8):
            A(f"v_sub_f32 v59, v{b+2*q}, v56"); A("v_fmac_f32 v58, v59, v59")
        A(f"v_mul_f32 v58, {f32(80.0)}, v58"); A("v_add_f32 v57, v57, v58")
        A(f"v_mul_f32 v57, {f32(1/640)}, v57"); A(f"v_add_f32 v57, {f32(1e-5)}, v57")
        A(f"v_rsq_f32 v{RS+2*qt}, v57")
        A(f"v_mul_f32 v{RS+2*qt+1}, v56, v{RS+2*qt}"); A(f"v_sub_f32 v{RS+2*qt+1}, 0, v{RS+2*qt+1}")
    for r in range(128):
        A(f"v_mov_b32 v{r}, 0")
    A("s_waitcnt lgkmcnt(0)")
    A(bar(0))
    L += wf_reads(0) + wf_reads(1)
    A(".p2align 3")
    st.seg("pro", L)
    for j in range(5):
        st.seg("l", trip(j))
    L = []
    A = L.append
    A(f"s_mul_i32 s50, s54, {2*54}"); A(f"s_lshl_b32 s51, s{CS}, 1"); A("s_add_u32 s50, s50, s51"); A("s_lshl_b32 s50, s50, 10")
    A(f"s_add_u32 s50, s50, {ACT}"); A(f"s_add_u32 s51, s50, {2*54*1024}")
    A("s_waitcnt vmcnt(0)")
    k = 0
    for a in range(2):
        for tp in range(2):
            U0 = 128 + 32 * (k % 2)
            for v in range(4):
                for hh in range(2):
                    d = U0 + 8 * v + 4 * hh
                    A(I(f"ds_read_b128 v[{d}:{d+3}], v{VST+1} offset:{256*v + (32*a+16*tp)*4 + 16*hh}", prod=("u", k, v, hh)))
            k += 1
            if k % 2 == 0 or True:
                pass
    L = L[:7]
    A = L.append
    groups = [(a, tp) for a in range(2) for tp in range(2)]
    def reads(k):
        a, tp = groups[k]
        U0 = 128 + 32 * (k % 2)
        return [I(f"ds_read_b128 v[{U0+8*v+4*hh}:{U0+8*v+4*hh+3}], v{VST+1} offset:{256*v + (32*a+16*tp)*4 + 16*hh}", prod=("u", k, v, hh))
                for v in range(4) for hh in range(2)]
    L += reads(0) + reads(1)
    for k, (a, tp) in enumerate(groups):
        U0 = 128 + 32 * (k % 2)
        for qt in range(2):
            r, nm = RS + 2 * qt, RS + 2 * qt + 1
            G = ACC(a, qt) + 8 * tp
            Uu = ACC(2 + a, qt) + 8 * tp
            tb = T + 16 * qt
            for e in range(8):
                need = [("u", k, v, hh) for v in range(4) for hh in range(2)] if (qt, e) == (0, 0) else []
                A(I(f"v_fma_f32 v{tb+e}, v{nm}, v{U0+e}, v{U0+8+e}", need=need))
                A(f"v_fma_f32 v{tb+8+e}, v{nm}, v{U0+16+e}, v{U0+24+e}")
            for e in range(8):
                A(f"v_fmac_f32 v{tb+e}, v{r}, v{G+e}")
                A(f"v_fmac_f32 v{tb+8+e}, v{r}, v{Uu+e}")
            for e in range(8):
                A(f"v_max_f32 v{tb+e}, 0, v{tb+e}")
            for e in range(8):
                A(f"v_mul_f32 v{tb+e}, v{tb+e}, v{tb+8+e}")
            for e in range(4):
                A(f"v_cvt_pk_bf16_f32 v{G+e}, v{tb+2*e}, v{tb+2*e+1}")
            A(f"buffer_store_dwordx4 v[{G}:{G+3}], v{VST}, s[{S_WS}:{S_WS+3}], s{50+qt} offen offset:{a*1024+tp*512}")
        if k + 2 < 4:
            L += reads(k + 2)
    A("K3_END:")
    A("s_endpgm")
    st.seg("epi", L)
    return st.finalize("k3", verbose=False)

if __name__ == "__main__":
    o = gen_k3()
    i0 = o.index("K3_L:"); i1 = o.index("s_cbranch_scc1 K3_L")
    print("trip est cycles", gapcosts(o[i0:i1]), "instrs", i1 - i0, "total", len(o))
    open("k3.txt", "w").write("\n".join(o))
```

```python
import sys
from common import *
import k0, k1, k2, k3

def build(extra_launch=()):
    ref = open(f"cdna_kernels/{NAME}.s.ref").read().splitlines() if len(sys.argv) < 3 else []
    hdr = [l for l in ref if l.startswith(";") and "@launch" not in l and "Override launch" not in l and "grid=ceil" not in l]
    ks = [("prep_kernel", k0.gen_k0(), k0.K0_GRID, k0.K0_LDS, 72, 72),
          ("attn_kernel", k1.gen_k1(), 256, k1.K1_LDS, 512, 256),
          ("oproj_kernel", k2.gen(2), 256, k2.K2_LDS, 336, 256),
          ("ffn1_kernel", k3.gen_k3(), k3.K3_GRID, k3.K3_LDS, 320, 256),
          ("ffn2_kernel", k2.gen(4), 256, k2.K4_LDS, 336, 256)]
    out = hdr[:]
    for name, _, grid, lds, _, _ in ks:
        out.append(f"; @launch kernel={name} grid=({grid},1,1) block=(256,1,1) lds={lds}")
    out += list(extra_launch)
    out += ['.amdgcn_target "amdgcn-amd-amdhsa--gfx950"', ".text"]
    s = "\n".join(out) + "\n"
    for name, lines, *_ in ks:
        s += f".globl {name}\n" + kernel_text(name, lines)
    s += '.section .rodata,"a"\n'
    for name, _, _, _, nfv, acc in ks:
        s += descriptor(name, nfv, acc)
    return s

if __name__ == "__main__":
    path = sys.argv[1] if len(sys.argv) > 1 else f"cdna_kernels/{NAME}.s"
    open(path, "w").write(build())
    print("wrote", path)
```
